```python
import torch

def _softmax(x, axis=-1):
    return torch.softmax(x, dim=axis)
def _gelu(x):
    return torch.nn.functional.gelu(x, approximate="tanh")
def _silu(x):
    return torch.nn.functional.silu(x)
def _sigmoid(x):
    return torch.sigmoid(x)
def _layernorm(x, axis=-1, eps=1e-5):
    m = x.mean(dim=axis, keepdim=True)
    v = x.var(dim=axis, keepdim=True, unbiased=False)
    return (x - m) / torch.sqrt(v + eps)
def _scatter_add(tgt, idx, src, axis=0):
    return tgt.clone().index_add_(axis, idx, src)
def _segment_sum(src, seg, n):
    out = torch.zeros((n,) + src.shape[1:], dtype=src.dtype)
    return out.index_add_(0, seg, src)
def _pad(x, pw):
    flat = tuple(v for pair in reversed(pw) for v in pair)
    return torch.nn.functional.pad(x, flat)

kernel_name = 'standalone__gqa_block_cached__near_ridge'

def setup_inputs():

    _w = (lambda a: (lambda t: t.to(torch.bfloat16) if t.is_floating_point() else t)(torch.as_tensor(a)))
    B, Sq, D = 8, 64, 576
    Hq, Hkv, Sk, Dh = 32, 16, 512, 128
    assert Hq % Hkv == 0, (Hq, Hkv)
    return {
        "x": _w((lambda *s: torch.randn(*s, dtype=torch.bfloat16) * 0.8)(B, Sq, D)),
        "k_cache": _w((lambda *s: torch.randn(*s, dtype=torch.bfloat16) * 0.8)(B, Hkv, Sk, Dh)),
        "v_cache": _w((lambda *s: torch.randn(*s, dtype=torch.bfloat16) * 0.05)(B, Hkv, Sk, Dh)),
        "wq": _w((lambda *s: torch.randn(*s, dtype=torch.bfloat16) * 0.8)(D, Hq * Dh) * (D ** -0.5)),
        "wo": _w((lambda *s: torch.randn(*s, dtype=torch.bfloat16) * 0.05)(Hq * Dh, D) * ((Hq * Dh) ** -0.5)),
    }

def reference(x, k_cache, v_cache, wq, wo):
    B, Sq, D = x.shape
    Hq, Dh = 32, 128
    Hkv = k_cache.shape[1]
    rep = Hq // Hkv
    q = (lambda x, *d: x.permute(*d))((x @ wq).reshape(B, Sq, Hq, Dh), 0, 2, 1, 3)
    k = (lambda x, n, axis: torch.repeat_interleave(x, n, dim=axis))(k_cache, rep, axis=1)
    v = (lambda x, n, axis: torch.repeat_interleave(x, n, dim=axis))(v_cache, rep, axis=1)
    scores = torch.einsum("bhqd,bhkd->bhqk", q, k) * (Dh ** -0.5)
    p = _softmax(scores, axis=-1)
    o = torch.einsum("bhqk,bhkd->bhqd", p, v)
    return (lambda x, *d: x.permute(*d))(o, 0, 2, 1, 3).reshape(B, Sq, Hq * Dh) @ wo
```

```python
class Asm:
    def __init__(self):
        self.L = []
        self.nlabel = 0
    def __call__(self, s):
        for line in s.strip("\n").split("\n"):
            self.L.append(line.strip())
    def label(self, name):
        self.L.append(name + ":")
    def newlabel(self, p="L"):
        self.nlabel += 1
        return f"{p}_{self.nlabel}"
    def nop(self, n):
        while n > 0:
            k = min(n, 16)
            self.L.append(f"s_nop {k-1}")
            n -= k
    def align(self, p):
        self.L.append(f".p2align {p}")
    def text(self):
        return "\n".join(self.L) + "\n"

def vr(a, n=1):
    return f"v{a}" if n == 1 else f"v[{a}:{a+n-1}]"
def sr(a, n=1):
    return f"s{a}" if n == 1 else f"s[{a}:{a+n-1}]"

def kernel_desc(name, vgpr=256, sgpr=102, accum=None):
    if accum is None: accum = (vgpr + 3) // 4 * 4
    return f""".p2align 6
.amdhsa_kernel {name}
  .amdhsa_next_free_vgpr {vgpr}
  .amdhsa_next_free_sgpr {sgpr}
  .amdhsa_accum_offset {accum}
  .amdhsa_group_segment_fixed_size 0
  .amdhsa_kernarg_size 64
  .amdhsa_user_sgpr_count 2
  .amdhsa_user_sgpr_kernarg_segment_ptr 1
  .amdhsa_system_sgpr_workgroup_id_x 1
.end_amdhsa_kernel
"""
```

```python
import sys, math
from asmlib import *

NAME = "standalone__gqa_block_cached__near_ridge"
P = dict(kv_aux="", w_aux="", stamps=False, prefetch=True, kv_first=5)
for a in sys.argv[2:]:
    k, v = a.split("=")
    P[k] = type(P[k])(eval(v)) if not isinstance(P[k], str) else v

WS_O = 0
WS_PART = 0x400000
WS_STAMP = 0x2000000

SLOT = 16384
KV_SLOT = [i * SLOT for i in range(8)]
WQ_SLOT = [5 * SLOT, 6 * SLOT, 7 * SLOT]
X_SLOT = [131072, 131072 + 8192, 131072 + 16384]
QX = 131072
MX = 131072 + 24576
LX = MX + 1024
OX = 0

SCALE = math.log2(math.e) / math.sqrt(128.0)
import struct
def f32bits(x): return struct.unpack("<I", struct.pack("<f", x))[0]

def prologue_common(A, ngrid, endlabel):
    A(f"""
    s_load_dwordx4 s[4:7], s[0:1], 0
    s_load_dwordx4 s[8:11], s[0:1], 16
    s_load_dwordx2 s[12:13], s[0:1], 32
    s_load_dwordx2 s[14:15], s[0:1], 56
    s_load_dwordx2 s[34:35], s[0:1], 40
    s_cmp_ge_u32 s2, {ngrid}
    s_cbranch_scc1 {endlabel}
    """)

def code_prefetch(A, startlabel, endlabel, vt=250):
    A(f"""
    s_getpc_b64 s[36:37]
    """)
    lab = A.newlabel("pc")
    A.label(lab)
    done = A.newlabel("pfdone")
    A(f"""
    v_lshlrev_b32 v{vt}, 7, v0
    v_mov_b32 v{vt+1}, s37
    v_add_co_u32 v{vt}, vcc, s36, v{vt}
    s_nop 1
    v_addc_co_u32 v{vt+1}, vcc, 0, v{vt+1}, vcc
    v_cmp_gt_u32 vcc, ({endlabel}-{lab})/128, v0
    s_and_saveexec_b64 s[38:39], vcc
    s_cbranch_execz {done}
    global_load_dword v{vt+2}, v[{vt}:{vt+1}], off
    """)
    A.label(done)
    A("s_mov_b64 exec, s[38:39]")

def stamp(A, idx):
    if not P["stamps"]: return
    A(f"s_memrealtime s[{60+2*idx}:{61+2*idx}]")

def k1(A):
    kn = "attn_kernel"
    A(f".globl {kn}\n.p2align 8\n.type {kn},@function\n{kn}:")
    if P["stamps"]: A("s_memrealtime s[60:61]")
    prologue_common(A, 256, "K1_end")
    A("""
    v_lshrrev_b32 v1, 6, v0
    v_and_b32 v2, 63, v0
    s_nop 0
    v_readfirstlane_b32 s16, v1
    """)
    if P["prefetch"]: code_prefetch(A, kn, "K1_codeend")
    A("""
    s_and_b32 s18, s2, 7
    s_lshl_b32 s18, s18, 2
    s_lshr_b32 s28, s2, 3
    s_and_b32 s28, s28, 3
    s_add_u32 s18, s18, s28        ; hq
    s_lshr_b32 s17, s2, 5          ; b
    s_lshr_b32 s19, s18, 1         ; kvh
    s_cmp_ge_u32 s16, 4
    s_cbranch_scc1 K1_loader
    """)
    A("""
    s_and_b32 s30, s16, 1
    s_lshr_b32 s31, s16, 1
    v_and_b32 v3, 31, v2           ; q
    v_lshrrev_b32 v4, 5, v2        ; h
    v_lshrrev_b32 v5, 4, v2        ; g
    v_and_b32 v6, 15, v2           ; i
    v_lshrrev_b32 v7, 2, v6        ; r4
    v_and_b32 v8, 3, v2            ; c
    """)
    A("""
    s_lshl_b32 s28, s30, 5
    v_add_u32 v9, s28, v3          ; row
    v_lshrrev_b32 v10, 1, v9
    v_and_b32 v10, 7, v10
    v_xor_b32 v10, v4, v10
    v_lshlrev_b32 v10, 4, v10
    v_lshl_add_u32 v10, v9, 7, v10
    """)
    A("""
    v_lshrrev_b32 v13, 1, v5       ; g>>1
    v_lshl_add_u32 v13, v13, 3, v7 ; 8*(g>>1)+r4
    v_lshlrev_b32 v13, 8, v13      ; *256
    v_and_b32 v14, 1, v5           ; g&1
    v_lshl_add_u32 v13, v14, 5, v13
    v_and_b32 v14, 1, v8
    v_lshl_add_u32 v15, v14, 4, v13
    v_lshrrev_b32 v14, 1, v8
    v_lshl_add_u32 v15, v14, 3, v15
    s_lshl_b32 s28, s31, 1               ; 2*nh
    v_xor_b32 v14, s28, v7
    v_lshl_add_u32 v11, v14, 6, v15
    v_xor_b32 v14, 1, v14
    v_lshl_add_u32 v12, v14, 6, v15
    """)
    def bar():
        A("s_barrier")
    for c in range(9):
        bar()
        xs = X_SLOT[c % 3]; wsl = WQ_SLOT[c % 3]
        A(f"v_add_u32 v9, {xs}, v10")
        A(f"v_add_u32 v13, {wsl}, v11")
        A(f"v_add_u32 v14, {wsl}, v12")
        def rd(ks):
            if ks == 0:
                A(f"ds_read_b128 v[{48+4*ks}:{51+4*ks}], v9")
            else:
                A(f"v_xor_b32 v15, {ks<<5}, v9")
                A(f"ds_read_b128 v[{48+4*ks}:{51+4*ks}], v15")
            for tt in range(2):
                for sec in range(2):
                    d = 16 + tt*16 + ks*4 + sec*2
                    A(f"ds_read_b64_tr_b16 v[{d}:{d+1}], v{13+tt} offset:{(16*ks+4*sec)*256}")
        def mm(ks):
            for tt in range(2):
                acc = 128 + 16*tt
                cin = "0" if (c == 0 and ks == 0) else f"v[{acc}:{acc+15}]"
                A(f"v_mfma_f32_32x32x16_bf16 v[{acc}:{acc+15}], v[{16+tt*16+ks*4}:{19+tt*16+ks*4}], v[{48+4*ks}:{51+4*ks}], {cin}")
        rd(0); rd(1); rd(2)
        A("s_waitcnt lgkmcnt(10)"); mm(0)
        rd(3)
        A("s_waitcnt lgkmcnt(10)"); mm(1)
        A("s_waitcnt lgkmcnt(5)"); mm(2)
        A("s_waitcnt lgkmcnt(0)"); mm(3)
    A("s_waitcnt vmcnt(0)")
    A.nop(12)
    for i in range(16):
        A(f"v_cvt_pk_bf16_f32 v{16+i}, v{128+2*i}, v{129+2*i}")
    A(f"""
    v_lshlrev_b32 v9, 4, v2              ; lane*16
    s_lshl_b32 s28, s16, 12              ; w*4096
    v_add_u32 v13, s28, v9
    v_add_u32 v13, {QX}, v13
    """)
    for f in range(4):
        A(f"ds_write_b128 v13, v[{16+4*f}:{19+4*f}] offset:{f*1024}")
    A(f"""
    s_lshl_b32 s28, s31, 5
    v_add_u32 v10, s28, v3
    v_and_b32 v11, 15, v10
    v_xor_b32 v11, v4, v11
    v_lshlrev_b32 v11, 4, v11
    v_lshl_add_u32 v10, v10, 8, v11
    s_lshl_b32 s28, s30, 12
    v_add_u32 v12, s28, v9
    v_add_u32 v12, {QX}, v12
    s_waitcnt lgkmcnt(0)
    """)
    for c in range(8):
        bar()
        if c == 0:
            for s in range(8):
                A(f"ds_read_b128 v[{96+4*s}:{99+4*s}], v12 offset:{(s>>2)*8192+(s&3)*1024}")
            A("s_waitcnt lgkmcnt(0)")
        A(f"v_add_u32 v11, {KV_SLOT[c]}, v10")
        for s in range(8):
            if s == 0:
                A(f"ds_read_b128 v[16:19], v11")
            else:
                A(f"v_xor_b32 v{13+(s&1)}, {s<<5}, v11")
                A(f"ds_read_b128 v[{16+4*s}:{19+4*s}], v{13+(s&1)}")
        acc = 128 + 16*c
        for s in range(8):
            A(f"s_waitcnt lgkmcnt({7-s})")
            cin = "0" if s == 0 else f"v[{acc}:{acc+15}]"
            A(f"v_mfma_f32_32x32x16_bf16 v[{acc}:{acc+15}], v[{16+4*s}:{19+4*s}], v[{96+4*s}:{99+4*s}], {cin}")
            if c > 0:
                pacc = acc - 16
                if c == 1 and s == 0:
                    A(f"v_max_f32 v64, v{pacc}, v{pacc+1}")
                else:
                    A(f"v_max3_f32 v64, v64, v{pacc+2*s}, v{pacc+2*s+1}")
    A.nop(12)
    for s in range(8):
        A(f"v_max3_f32 v64, v64, v{240+2*s}, v{241+2*s}")
    A(f"""
    v_mov_b32 v65, v64
    s_nop 1
    v_permlane32_swap_b32 v64, v65
    s_nop 1
    v_max_f32 v64, v64, v65
    v_lshlrev_b32 v9, 2, v2              ; lane*4
    s_lshl_b32 s28, s16, 8
    v_add_u32 v13, s28, v9
    v_add_u32 v13, {MX}, v13
    ds_write_b32 v13, v64
    s_xor_b32 s28, s16, 2
    s_lshl_b32 s28, s28, 8
    v_add_u32 v14, s28, v9
    v_add_u32 v14, {MX}, v14
    """)
    A(f"""
    v_lshrrev_b32 v66, 1, v5
    v_lshl_add_u32 v66, v66, 2, v7       ; 4*(g>>1)+r4
    s_lshl_b32 s28, s31, 5
    v_add_u32 v66, s28, v66
    v_lshlrev_b32 v66, 8, v66
    v_and_b32 v67, 1, v5
    v_lshl_add_u32 v66, v67, 5, v66
    v_lshl_add_u32 v66, v8, 3, v66
    s_lshl_b32 s28, s31, 1
    v_xor_b32 v67, s28, v7               ; (2kh)^r4
    """)
    for u in range(4):
        A(f"v_xor_b32 v68, {u}, v67")
        A(f"v_lshl_add_u32 v{4+u if False else 8+u}, v68, 6, v66" if False else f"v_lshl_add_u32 v{60+u}, v68, 6, v66")
    A("""
    v_mov_b32 v3, v60
    v_mov_b32 v4, v61
    v_mov_b32 v5, v62
    v_mov_b32 v6, v63
    v_mov_b32 v7, v64
    s_waitcnt lgkmcnt(0)
    """)
    A("""
    v_mov_b32 v8, 0x3f803f80
    v_mov_b32 v9, 0x3f803f80
    v_mov_b32 v10, 0x3f803f80
    v_mov_b32 v11, 0x3f803f80
    """)
    A(f"s_mov_b32 s40, {f32bits(SCALE):#x}")
    for c in range(8):
        bar()
        if c == 0:
            A("""
            ds_read_b32 v12, v14
            s_waitcnt lgkmcnt(0)
            v_max_f32 v7, v7, v12
            v_mul_f32 v7, s40, v7
            v_sub_f32 v7, 0, v7                  ; -c*m
            """)
        sl = KV_SLOT[c]
        for u in range(4):
            A(f"v_add_u32 v{12+u}, {sl}, v{3+u}")
        sacc = 128 + 16*c
        def rdv(ks):
            for u in range(4):
                for sec in range(2):
                    d = 96 + ks*16 + u*4 + sec*2
                    A(f"ds_read_b64_tr_b16 v[{d}:{d+1}], v{12+u} offset:{(16*ks+8*sec)*256}")
        def ex(ks):
            for j in range(8):
                r = sacc + 8*ks + j
                A(f"v_fma_f32 v{r}, v{r}, s40, v7")
            for j in range(8):
                r = sacc + 8*ks + j
                A(f"v_exp_f32 v{r}, v{r}")
            A("s_nop 0")
            for j in range(4):
                r = sacc + 8*ks + 2*j
                A(f"v_cvt_pk_bf16_f32 v{sacc+8*ks+j}, v{r}, v{r+1}")
        def mmv(ks):
            pb = sacc + 8*ks
            for u in range(4):
                acc = 16 + 16*u
                cin = "0" if (c == 0 and ks == 0) else f"v[{acc}:{acc+15}]"
                A(f"v_mfma_f32_32x32x16_bf16 v[{acc}:{acc+15}], v[{96+ks*16+u*4}:{99+ks*16+u*4}], v[{pb}:{pb+3}], {cin}")
            cin = "0" if (c == 0 and ks == 0) else "v[80:95]"
            A(f"v_mfma_f32_32x32x16_bf16 v[80:95], v[8:11], v[{pb}:{pb+3}], {cin}")
        rdv(0)
        ex(0)
        A("s_waitcnt lgkmcnt(0)")
        rdv(1)
        A("s_nop 1")
        mmv(0)
        ex(1)
        A("s_waitcnt lgkmcnt(0)")
        A("s_nop 1")
        mmv(1)
    A.nop(12)
    A(f"""
    v_lshlrev_b32 v3, 4, v2              ; lane*16
    s_lshl_b32 s28, s16, 13              ; w*8192
    v_add_u32 v4, s28, v3
    v_add_u32 v4, {QX}, v4
    s_xor_b32 s29, s16, 2
    s_lshl_b32 s28, s29, 13
    v_add_u32 v5, s28, v3
    v_add_u32 v5, {QX}, v5
    v_lshlrev_b32 v6, 2, v2
    s_lshl_b32 s28, s16, 8
    v_add_u32 v7, s28, v6
    s_lshl_b32 s28, s29, 8
    v_add_u32 v6, s28, v6
    """)
    for i in range(8):
        A(f"ds_write_b128 v4, v[{48+4*i}:{51+4*i}] offset:{i*1024}")
    A("ds_write_b32 v7, v80")
    A("s_waitcnt lgkmcnt(0)")
    bar()
    for i in range(8):
        A(f"ds_read_b128 v[{96+4*i}:{99+4*i}], v5 offset:{i*1024}")
    A("ds_read_b32 v8, v6")
    A("s_waitcnt lgkmcnt(0)")
    A("v_add_f32 v8, v8, v80")
    A("v_rcp_f32 v8, v8")
    for i in range(32):
        A(f"v_add_f32 v{16+i}, v{16+i}, v{96+i}")
    for i in range(32):
        A(f"v_mul_f32 v{16+i}, v{16+i}, v8")
    for i in range(16):
        A(f"v_cvt_pk_bf16_f32 v{48+i}, v{16+2*i}, v{17+2*i}")
    A(f"""
    v_bfe_u32 v3, v2, 4, 1
    v_lshlrev_b32 v3, 10, v3
    v_lshrrev_b32 v4, 5, v2
    v_lshl_add_u32 v3, v4, 8, v3
    v_and_b32 v4, 15, v2
    v_lshl_add_u32 v3, v4, 4, v3
    s_lshl_b32 s28, s30, 11
    s_lshl_b32 s29, s31, 13
    s_add_u32 s28, s28, s29
    s_lshl_b32 s29, s17, 5
    s_add_u32 s29, s29, s18
    s_lshl_b32 s29, s29, 14              ; (b*32+hq)*16384
    s_add_u32 s28, s28, s29
    s_add_u32 s29, s28, 4096
    s_mov_b32 s20, s14
    s_mov_b32 s21, s15
    s_mov_b32 s22, 0x400000
    s_mov_b32 s23, 0x20000
    """)
    for u in range(2):
        for a1 in range(2):
            d = 48 + u*8 + a1*4
            A(f"buffer_store_dwordx4 v[{d}:{d+3}], v3, s[20:23], s{28+u} offen offset:{a1*512}")
    if P["stamps"]:
        A("s_waitcnt vmcnt(0)")
        A("s_memrealtime s[62:63]")
        A("s_waitcnt lgkmcnt(0)")
        A(f"""
        s_lshl_b32 s28, s2, 5
        s_add_u32 s28, s28, {WS_STAMP}
        v_mov_b32 v4, s28
        v_mov_b32 v8, 0
        v_mov_b32 v9, s60
        v_mov_b32 v10, s62
        v_mov_b32 v11, 0
        v_cmp_eq_u32 vcc, 0, v0
        s_and_saveexec_b64 s[38:39], vcc
        s_cbranch_execz K1_end
        global_store_dwordx4 v4, v[8:11], s[14:15]
        """)
    A("s_endpgm")

    A.label("K1_loader")
    A("""
    s_waitcnt lgkmcnt(0)
    s_cmp_ge_u32 s16, 6
    s_cbranch_scc1 K1_kvloader
    """)
    A(f"""
    s_sub_u32 s30, s16, 4              ; wa
    s_mov_b32 s20, s4
    s_mov_b32 s21, s5
    s_mov_b32 s22, {8*64*576*2}
    s_mov_b32 s23, 0x20000
    s_mov_b32 s24, s10
    s_mov_b32 s25, s11
    s_mov_b32 s26, {576*4096*2}
    s_mov_b32 s27, 0x20000
    v_lshrrev_b32 v5, 3, v2
    v_mul_u32_u24 v5, 1152, v5
    v_and_b32 v6, 7, v2
    v_lshrrev_b32 v7, 4, v2
    v_xor_b32 v6, v6, v7
    v_lshl_add_u32 v3, v6, 4, v5
    v_xor_b32 v6, 4, v6
    v_lshl_add_u32 v4, v6, 4, v5
    v_and_b32 v6, 15, v2
    v_lshlrev_b32 v9, 2, v7
    v_xor_b32 v6, v6, v9
    v_lshlrev_b32 v6, 4, v6
    v_lshl_add_u32 v8, v7, 13, v6
    s_mul_i32 s40, s17, 73728
    s_mul_i32 s28, s30, {32*1152}
    s_add_u32 s40, s40, s28
    s_lshl_b32 s41, s18, 8
    s_lshl_b32 s28, s30, 18
    s_add_u32 s41, s41, s28
    s_lshl_b32 s42, s30, 12
    s_lshl_b32 s43, s30, 13
    """)
    def issueA(c):
        A(f"s_add_u32 m0, s42, {X_SLOT[c%3]}")
        for j in range(4):
            A(f"s_add_u32 s28, s40, {c*128 + j*8192}")
            A(f"buffer_load_dwordx4 v{3+(j&1)}, s[20:23], s28 offen offset:{j*1024} {P['w_aux']} lds")
        for grp in range(2):
            A(f"s_add_u32 m0, s43, {WQ_SLOT[c%3] + grp*4096}")
            for j in range(4):
                i = grp*4 + j
                A(f"s_add_u32 s28, s41, {(64*c + 4*i)*8192 - 1024*j}")
                A(f"buffer_load_dwordx4 v8, s[24:27], s28 offen offset:{j*1024} {P['w_aux']} lds")
    for c in range(3): issueA(c)
    issued = 3
    for c in range(9):
        A(f"s_waitcnt vmcnt({(issued-1-c)*12})")
        A("s_barrier")
        if c >= 1 and issued < 9:
            issueA(issued); issued += 1
    for i in range(9, 26): A("s_barrier")
    A("s_endpgm")

    A.label("K1_kvloader")
    A(f"""
    s_sub_u32 s30, s16, 6              ; wk
    s_mov_b32 s20, s6
    s_mov_b32 s21, s7
    s_mov_b32 s22, 0x1000000
    s_mov_b32 s23, 0x20000
    s_mov_b32 s24, s8
    s_mov_b32 s25, s9
    s_mov_b32 s26, 0x1000000
    s_mov_b32 s27, 0x20000
    v_lshrrev_b32 v7, 4, v2
    v_and_b32 v6, 15, v2
    v_lshlrev_b32 v5, 8, v7            ; (l>>4)*256
    v_xor_b32 v9, v6, v7               ; (l&15)^(l>>4)
    v_lshl_add_u32 v10, v9, 4, v5      ; a=0
    v_xor_b32 v11, 0x40, v10
    v_xor_b32 v12, 0x80, v10
    v_xor_b32 v13, 0xc0, v10
    v_lshlrev_b32 v9, 2, v7
    v_xor_b32 v6, v6, v9
    v_lshl_add_u32 v8, v6, 4, v5       ; V voffset
    s_lshl_b32 s40, s17, 4
    s_add_u32 s40, s40, s19
    s_lshl_b32 s40, s40, 17
    s_lshl_b32 s43, s30, 13
    s_add_u32 s40, s40, s43
    s_and_b32 s44, s18, 1
    s_lshl_b32 s44, s44, 16
    """)
    def issueKV(n):
        isV = n >= 8
        c = n & 7
        srd = "s[24:27]" if isV else "s[20:23]"
        A(f"s_add_u32 s28, s44, {c*16384}")
        A(f"s_and_b32 s28, s28, 0x1ffff")
        A(f"s_add_u32 s28, s28, s40")
        A(f"s_add_u32 s29, s28, 4096")
        for grp in range(2):
            A(f"s_add_u32 m0, s43, {KV_SLOT[c] + grp*4096}")
            A("s_nop 0")
            for j in range(4):
                vo = 8 if isV else 10 + j
                A(f"buffer_load_dwordx4 v{vo}, {srd}, s{28+grp} offen offset:{j*1024} {P['kv_aux']} lds")
    nf = P["kv_first"]
    for n in range(nf): issueKV(n)
    issued = nf
    for bi in range(26):
        need = None
        if 9 <= bi <= 16: need = bi - 9
        elif 17 <= bi <= 24: need = bi - 17 + 8
        if need is not None:
            assert issued > need
            A(f"s_waitcnt vmcnt({(issued-1-need)*8})")
        A("s_barrier")
        if bi == 9:
            while issued < 8:
                issueKV(issued); issued += 1
        if bi >= 10 and issued < 16 and issued - 8 <= bi - 10:
            issueKV(issued); issued += 1
    A("s_endpgm")
    A.label("K1_end")
    A("s_endpgm")
    A.label("K1_codeend")

def k2(A):
    kn = "oproj_kernel"
    A(f".p2align 8\n.globl {kn}\n.type {kn},@function\n{kn}:")
    prologue_common(A, 256, "K2_end")
    A("""
    v_lshrrev_b32 v1, 6, v0
    v_and_b32 v2, 63, v0
    s_nop 0
    v_readfirstlane_b32 s16, v1
    s_and_b32 s18, s2, 7           ; j
    s_lshr_b32 s19, s2, 3
    s_and_b32 s19, s19, 3          ; i'
    s_lshr_b32 s17, s2, 5          ; b
    s_waitcnt lgkmcnt(0)
    """)
    A(f"""
    s_mov_b32 s20, s12
    s_mov_b32 s21, s13
    s_mov_b32 s22, {4096*576*2}
    s_mov_b32 s23, 0x20000
    s_mov_b32 s24, s14
    s_mov_b32 s25, s15
    s_mov_b32 s26, 0x2000000
    s_mov_b32 s27, 0x20000
    s_movk_i32 s28, 3641
    """)
    for n in range(9):
        A(f"""
        v_add_u32 v12, {64*n}, v2
        v_mul_lo_u32 v13, v12, s28
        v_lshrrev_b32 v13, 16, v13         ; row = P/18
        v_mul_u32_u24 v14, 18, v13
        v_sub_u32 v14, v12, v14            ; piece
        v_mul_u32_u24 v13, 1152, v13
        v_lshl_add_u32 v{3+n}, v14, 4, v13
        """)
        if n & 3: A(f"v_subrev_u32 v{3+n}, {1024*(n&3)}, v{3+n}")
    A(f"""
    s_mul_i32 s40, s18, {512*1152}
    s_mul_i32 s28, s19, 288
    s_add_u32 s40, s40, s28
    s_mul_i32 s28, s16, {128*1152}
    s_add_u32 s40, s40, s28
    s_mul_i32 s41, s16, {4*9216}
    """)
    for blk in range(4):
        A(f"s_add_u32 s28, s40, {blk*32*1152}")
        for n in range(9):
            if n % 4 == 0:
                A(f"s_add_u32 m0, s41, {blk*9216 + (n//4)*4096}")
                A("s_nop 0")
            A(f"buffer_load_dwordx4 v{3+n}, s[20:23], s28 offen offset:{(n&3)*1024} lds")
    A(f"""
    s_and_b32 s30, s16, 1
    s_lshr_b32 s31, s16, 1
    v_lshlrev_b32 v12, 4, v2
    s_lshl_b32 s42, s17, 5
    s_lshl_b32 s28, s18, 2
    s_add_u32 s42, s42, s28
    s_lshl_b32 s42, s42, 14
    s_lshl_b32 s28, s30, 11
    s_add_u32 s42, s42, s28
    """)
    for T in range(16):
        A(f"s_add_u32 s28, s42, {(T>>2)*16384 + (T&3)*4096}")
        for qq in range(2):
            d = 128 + (T*2+qq)*4
            A(f"buffer_load_dwordx4 v[{d}:{d+3}], v12, s[24:27], s28 offen offset:{qq*1024}")
    A(f"""
    v_lshrrev_b32 v13, 5, v2           ; g>>1
    v_lshlrev_b32 v13, 4, v13
    v_bfe_u32 v14, v2, 4, 1            ; g&1
    v_lshl_add_u32 v13, v14, 2, v13
    v_bfe_u32 v14, v2, 2, 2            ; r4
    v_add_u32 v13, v13, v14
    v_mul_u32_u24 v13, 288, v13
    v_and_b32 v14, 3, v2
    v_lshl_add_u32 v13, v14, 3, v13
    s_lshl_b32 s28, s31, 7             ; 4*nh*32
    v_add_u32 v13, s28, v13
    v_add_u32 v14, 65536, v13
    v_add_u32 v15, 131072, v13
    s_waitcnt vmcnt(0)
    s_barrier
    """)
    for T in range(16):
        buf = 16 + (T & 1) * 20
        for u in range(5):
            for sec in range(2):
                off = (32*T + 8*sec)*288 + 32*u
                base = 13 + off // 65536
                d = buf + u*4 + sec*2
                A(f"ds_read_b64_tr_b16 v[{d}:{d+1}], v{base} offset:{off % 65536}")
        A("s_waitcnt lgkmcnt(0)")
        for u in range(5):
            for qq in range(2):
                acc = 64 + (u*2+qq)*4
                cin = "0" if T == 0 else f"v[{acc}:{acc+3}]"
                b = 128 + (T*2+qq)*4
                A(f"v_mfma_f32_16x16x32_bf16 v[{acc}:{acc+3}], v[{buf+u*4}:{buf+u*4+3}], v[{b}:{b+3}], {cin}")
    A.nop(8)
    A(f"""
    s_lshl_b32 s28, s18, 3
    s_add_u32 s28, s28, s17
    s_lshl_b32 s28, s28, 2
    s_add_u32 s28, s28, s19
    s_mul_i32 s28, s28, 36864
    s_add_u32 s28, s28, {WS_PART}
    s_lshl_b32 s29, s31, 14            ; 4*nh*4096
    s_add_u32 s28, s28, s29
    s_lshl_b32 s29, s30, 11            ; 2*qh*1024
    s_add_u32 s28, s28, s29
    """)
    for u in range(5):
        A(f"s_add_u32 s29, s28, {u*4096}")
        for qq in range(2):
            acc = 64 + (u*2+qq)*4
            A(f"buffer_store_dwordx4 v[{acc}:{acc+3}], v12, s[24:27], s29 offen offset:{qq*1024}")
    A.label("K2_end")
    A("s_endpgm")

def k3(A):
    kn = "reduce_kernel"
    A(f".p2align 8\n.globl {kn}\n.type {kn},@function\n{kn}:")
    prologue_common(A, 288, "K3_end")
    A(f"""
    v_lshrrev_b32 v1, 6, v0
    v_and_b32 v2, 63, v0
    s_nop 0
    v_readfirstlane_b32 s16, v1
    s_lshl_b32 s17, s2, 2
    s_add_u32 s17, s17, s16            ; tg 0..1151
    s_mov_b32 s28, {(1<<32)//144+1}
    s_mul_hi_u32 s18, s17, s28         ; b
    s_mul_i32 s29, s18, 144
    s_sub_u32 s19, s17, s29            ; rem
    s_mov_b32 s28, {(1<<32)//36+1}
    s_mul_hi_u32 s30, s19, s28         ; i'
    s_mul_i32 s29, s30, 36
    s_sub_u32 s31, s19, s29            ; tl
    s_waitcnt lgkmcnt(0)
    s_mov_b32 s24, s14
    s_mov_b32 s25, s15
    s_mov_b32 s26, 0x2000000
    s_mov_b32 s27, 0x20000
    s_mov_b32 s20, s34
    s_mov_b32 s21, s35
    s_mov_b32 s22, {8*64*576*2}
    s_mov_b32 s23, 0x20000
    v_lshlrev_b32 v3, 4, v2
    s_lshl_b32 s40, s17, 10
    s_add_u32 s40, s40, {WS_PART}
    """)
    for j in range(8):
        A(f"s_add_u32 s28, s40, {j*32*36864}")
        A(f"buffer_load_dwordx4 v[{16+4*j}:{19+4*j}], v3, s[24:27], s28 offen")
    A(f"""
    s_and_b32 s28, s31, 3              ; qt
    s_lshl_b32 s28, s28, 4
    s_lshl_b32 s29, s18, 6
    s_add_u32 s28, s28, s29
    s_mul_i32 s28, s28, 1152
    s_mul_i32 s29, s30, 288
    s_add_u32 s28, s28, s29
    s_lshr_b32 s29, s31, 2             ; nt
    s_lshl_b32 s29, s29, 5
    s_add_u32 s28, s28, s29
    v_and_b32 v4, 15, v2
    v_mul_u32_u24 v4, 1152, v4
    v_lshrrev_b32 v5, 4, v2
    v_lshl_add_u32 v4, v5, 3, v4
    s_waitcnt vmcnt(0)
    """)
    for j in range(1, 8):
        for r in range(4):
            A(f"v_add_f32 v{16+r}, v{16+r}, v{16+4*j+r}")
    A("""
    v_cvt_pk_bf16_f32 v8, v16, v17
    v_cvt_pk_bf16_f32 v9, v18, v19
    buffer_store_dwordx2 v[8:9], v4, s[20:23], s28 offen
    """)
    A.label("K3_end")
    A("s_endpgm")

A = Asm()
hdr = f"""; generated by gen1.py
; @launch kernel=attn_kernel grid=(256,1,1) block=(512,1,1) lds=163840
; @launch kernel=oproj_kernel grid=(256,1,1) block=(256,1,1) lds=147456
; @launch kernel=reduce_kernel grid=(288,1,1) block=(256,1,1) lds=0
.amdgcn_target "amdgcn-amd-amdhsa--gfx950"
.text
"""
k1(A); k2(A); k3(A)
out = hdr + A.text() + '.section .rodata,"a"\n' + kernel_desc("attn_kernel") + kernel_desc("oproj_kernel") + kernel_desc("reduce_kernel", vgpr=64)
open(sys.argv[1], "w").write(out)
```

```python
import sys, math, struct
from asmlib import *

NAME = "standalone__gqa_block_cached__near_ridge"
P = dict(kv_aux="", w_aux="", wo_aux="", stamps=False, prefetch=True, rot=True,
         ksched="0,0,1,3,5",
         explead=2, sleep=1, cyc0=17, cyc1=25)
for a in sys.argv[2:]:
    k, v = a.split("=")
    P[k] = type(P[k])(eval(v)) if not isinstance(P[k], str) else v

WS_O = 0
WS_PART = 0x400000
WS_FLAG1 = 0x1000000
WS_FLAG2 = 0x1010000
WS_STAMP = 0x2000000
WS_SIZE = 0x4000000

SLOT = 16384
KV_SLOT = [i * SLOT for i in range(8)]
WQ_SLOT = [5 * SLOT, 6 * SLOT, 7 * SLOT]
X_SLOT = [131072, 131072 + 8192, 131072 + 16384]
QX = 131072
MX = 131072 + 24576
NX = MX + 1024
SCALE = math.log2(math.e) / math.sqrt(128.0)
def f32bits(x): return struct.unpack("<I", struct.pack("<f", x))[0]

NBAR = 28
STAMPS = []
def stamp(A, name, role):
    if not P["stamps"]: return
    lst = STAMPS_BY_ROLE.setdefault(role, [])
    k = len(lst)
    assert k < 13, "too many stamps"
    lst.append(name)
    A(f"s_memrealtime s[{64+2*k}:{65+2*k}]")
STAMPS_BY_ROLE = {}

def stamp_write(A, role, tid):
    if not P["stamps"]: return
    n = len(STAMPS_BY_ROLE.get(role, []))
    A("s_waitcnt vmcnt(0)")
    A("s_memrealtime s[62:63]")
    A("s_waitcnt lgkmcnt(0)")
    A(f"""
    s_lshl_b32 s28, s2, 6
    s_add_u32 s28, s28, {WS_STAMP + role*0x10000}
    v_mov_b32 v20, s28
    s_sub_u32 s94, s94, s92
    v_mov_b32 v24, s94
    v_mov_b32 v25, s60
    v_mov_b32 v26, s62
    """)
    for k in range(13):
        A(f"v_mov_b32 v{27+k}, s{64+2*k}" if k < n else f"v_mov_b32 v{27+k}, 0")
    lab = A.newlabel("sk")
    A(f"""
    v_cmp_eq_u32 vcc, {tid}, v0
    s_and_saveexec_b64 s[38:39], vcc
    s_cbranch_execz {lab}
    global_store_dwordx4 v20, v[24:27], s[34:35]
    global_store_dwordx4 v20, v[28:31], s[34:35] offset:16
    global_store_dwordx4 v20, v[32:35], s[34:35] offset:32
    global_store_dwordx4 v20, v[36:39], s[34:35] offset:48
    """)
    A.label(lab)
    A("s_mov_b64 exec, s[38:39]")

def interleave(A, mf, fill, lead=0):
    n = len(mf)
    k = 0
    for _ in range(lead):
        if k < len(fill): A(fill[k]); k += 1
    rem = len(fill) - k
    for i, m in enumerate(mf):
        A(m)
        tgt = lead + (rem * (i + 1) + n - 1) // n
        while k < min(tgt, len(fill)):
            A(fill[k]); k += 1
    while k < len(fill):
        A(fill[k]); k += 1

def kernel(A):
    kn = NAME + "_kernel"
    A(f".globl {kn}\n.p2align 8\n.type {kn},@function\n{kn}:")
    if P["stamps"]: A("s_memrealtime s[60:61]")
    A("""
    s_load_dwordx4 s[4:7], s[0:1], 0
    s_load_dwordx4 s[8:11], s[0:1], 16
    s_load_dwordx4 s[12:15], s[0:1], 32
    s_load_dwordx4 s[32:35], s[0:1], 48
    v_lshrrev_b32 v1, 6, v0
    v_and_b32 v2, 63, v0
    s_cmp_ge_u32 s2, 256
    v_readfirstlane_b32 s16, v1
    s_cbranch_scc1 K_end
    s_and_b32 s19, s2, 7           ; j
    s_lshr_b32 s28, s2, 3
    s_and_b32 s31, s28, 3          ; i
    s_lshl_b32 s18, s19, 2
    s_add_u32 s18, s18, s31        ; hq
    s_lshr_b32 s17, s2, 5          ; b
    s_cmp_lt_u32 s16, 4
    s_cbranch_scc1 K_compute
    s_cmp_ge_u32 s16, 6
    s_cbranch_scc1 K_kvloader
    """)
    A(f"""
    s_sub_u32 s30, s16, 4              ; wa
    v_lshrrev_b32 v5, 3, v2
    v_mul_u32_u24 v5, 1152, v5
    v_and_b32 v6, 7, v2
    v_lshrrev_b32 v7, 4, v2
    v_xor_b32 v6, v6, v7
    v_lshl_add_u32 v3, v6, 4, v5       ; par 0
    v_xor_b32 v6, 4, v6
    v_lshl_add_u32 v4, v6, 4, v5       ; par 1
    v_add_u32 v5, 16384, v3
    v_add_u32 v6, 24576, v4
    v_add_u32 v4, 8192, v4
    v_and_b32 v16, 15, v2
    v_lshlrev_b32 v17, 2, v7
    v_xor_b32 v16, v16, v17
    v_lshlrev_b32 v16, 4, v16
    v_lshl_add_u32 v8, v7, 13, v16
    """)
    for jj in range(1, 8):
        A(f"v_add_u32 v{8+jj}, {32768*jj - 1024*(jj&3)}, v8")
    A(f"""
    s_mul_i32 s40, s17, 73728
    s_mul_i32 s28, s30, {32*1152}
    s_add_u32 s40, s40, s28
    s_lshl_b32 s41, s18, 8
    s_lshl_b32 s28, s30, 18
    s_add_u32 s41, s41, s28
    s_lshl_b32 s42, s30, 12
    s_add_u32 s42, s42, {X_SLOT[0]}
    s_lshl_b32 s43, s30, 13
    s_add_u32 s43, s43, {WQ_SLOT[0]}
    s_mov_b32 s44, 0
    """)
    if P["rot"]:
        A("""
        s_mul_i32 s44, s31, 3
        s_add_u32 s44, s44, s17
        s_cmp_ge_u32 s44, 9
        s_cselect_b32 s28, 9, 0
        s_sub_u32 s44, s44, s28
        s_cmp_ge_u32 s44, 9
        s_cselect_b32 s28, 9, 0
        s_sub_u32 s44, s44, s28
        s_lshl_b32 s28, s44, 7
        s_add_u32 s40, s40, s28
        s_lshl_b32 s28, s44, 19
        s_add_u32 s41, s41, s28
        """)
    A(f"""
    s_mov_b32 s45, 0
    s_mov_b32 s46, 0                   ; slot
    s_waitcnt lgkmcnt(0)
    s_mov_b32 s20, s4
    s_mov_b32 s21, s5
    s_mov_b32 s22, {8*64*576*2}
    s_mov_b32 s23, 0x20000
    s_mov_b32 s24, s10
    s_mov_b32 s25, s11
    s_mov_b32 s26, {576*4096*2}
    s_mov_b32 s27, 0x20000
    """)
    stamp(A, "ready", 1)
    A.label("A_loop")
    A("""
    s_cmp_lt_u32 s45, 2
    s_cbranch_scc1 A_issue
    s_waitcnt vmcnt(12)
    s_barrier
    """)
    A.label("A_issue")
    A("s_mov_b32 m0, s42")
    A("s_add_u32 s28, s43, 4096")
    for j in range(4):
        A(f"buffer_load_dwordx4 v{3+j}, s[20:23], s40 offen offset:{j*1024} {P['w_aux']} lds")
    A("s_mov_b32 m0, s43")
    A("s_add_u32 s44, s44, 1")
    for jj in range(4):
        A(f"buffer_load_dwordx4 v{8+jj}, s[24:27], s41 offen offset:{jj*1024} {P['w_aux']} lds")
    A("s_mov_b32 m0, s28")
    A("s_add_u32 s40, s40, 128")
    for jj in range(4, 8):
        A(f"buffer_load_dwordx4 v{8+jj}, s[24:27], s41 offen offset:{(jj&3)*1024} {P['w_aux']} lds")
    A(f"""
    s_add_u32 s41, s41, {64*8192}
    s_cmp_lt_u32 s44, 9
    s_cbranch_scc1 A_nowrap
    s_mov_b32 s44, 0
    s_sub_u32 s40, s40, {9*128}
    s_sub_u32 s41, s41, {9*64*8192}
    """)
    A.label("A_nowrap")
    A(f"""
    s_add_u32 s42, s42, 8192
    s_add_u32 s43, s43, 16384
    s_add_u32 s46, s46, 1
    s_cmp_lt_u32 s46, 3
    s_cbranch_scc1 A_nowrap2
    s_mov_b32 s46, 0
    s_sub_u32 s42, s42, {3*8192}
    s_sub_u32 s43, s43, {3*16384}
    """)
    A.label("A_nowrap2")
    A("""
    s_add_u32 s45, s45, 1
    s_cmp_lt_u32 s45, 9
    s_cbranch_scc1 A_loop
    s_waitcnt vmcnt(12)
    s_barrier
    s_waitcnt vmcnt(0)
    s_barrier
    """)
    stamp(A, "A done", 1)
    A(f"""
    s_mov_b32 s20, s12
    s_mov_b32 s21, s13
    s_mov_b32 s22, {4096*576*2}
    s_movk_i32 s28, 3641
    """)
    for n in range(9):
        A(f"""
        v_add_u32 v16, {64*n}, v2
        v_mul_lo_u32 v17, v16, s28
        v_lshrrev_b32 v17, 16, v17
        v_mul_u32_u24 v18, 18, v17
        v_sub_u32 v18, v16, v18
        v_mul_u32_u24 v17, 1152, v17
        v_lshl_add_u32 v{3+n}, v18, 4, v17
        """)
        if n & 3: A(f"v_subrev_u32 v{3+n}, {1024*(n&3)}, v{3+n}")
    A(f"""
    s_mul_i32 s40, s19, {512*1152}
    s_mul_i32 s28, s31, 288
    s_add_u32 s40, s40, s28
    s_mul_i32 s28, s30, {32*1152}
    s_add_u32 s40, s40, s28
    s_mul_i32 s41, s30, 9216
    """)
    def issueWO(pair):
        A(f"s_add_u32 s28, s40, {pair*64*1152}")
        for n in range(9):
            if n % 4 == 0:
                A(f"s_add_u32 m0, s41, {pair*2*9216 + (n//4)*4096}")
                A("s_nop 0")
            A(f"buffer_load_dwordx4 v{3+n}, s[20:23], s28 offen offset:{(n&3)*1024} {P['wo_aux']} lds")
    smax = lambda i: (9216*(i+1)-1)//16384
    need_bar = {}
    for p in range(8):
        s = smax(2*p+1)
        need_bar[p] = 18 + s if s <= 6 else 26
    for bi in range(9, NBAR):
        if bi == NBAR - 1:
            A("s_waitcnt vmcnt(0)")
        A("s_barrier")
        if bi == 17:
            A(f"v_mov_b32 v20, {NX}")
            A("ds_read_b32 v20, v20")
            A("s_waitcnt lgkmcnt(0)")
            A("v_readfirstlane_b32 s50, v20")
        for p in range(8):
            if need_bar[p] == bi: issueWO(p)
    stamp(A, "bars done", 1)
    A("s_cmp_eq_u32 s16, 4")
    A("s_cbranch_scc1 K_nonce_read")
    stamp_write(A, 1, 320)
    A("s_endpgm")

    A.label("K_kvloader")
    A(f"""
    s_sub_u32 s30, s16, 6              ; wk
    v_lshrrev_b32 v7, 4, v2
    v_and_b32 v6, 15, v2
    v_lshlrev_b32 v5, 8, v7
    v_xor_b32 v9, v6, v7
    v_lshl_add_u32 v10, v9, 4, v5
    v_xor_b32 v11, 0x40, v10
    v_xor_b32 v12, 0x80, v10
    v_xor_b32 v13, 0xc0, v10
    v_lshlrev_b32 v9, 2, v7
    v_xor_b32 v6, v6, v9
    v_lshl_add_u32 v8, v6, 4, v5
    s_lshr_b32 s28, s18, 1             ; kvh
    s_lshl_b32 s40, s17, 4
    s_add_u32 s40, s40, s28
    s_lshl_b32 s40, s40, 17
    s_lshl_b32 s43, s30, 13
    s_add_u32 s40, s40, s43
    s_and_b32 s44, s18, 1
    s_lshl_b32 s44, s44, 16
    s_waitcnt lgkmcnt(0)
    s_mov_b32 s20, s6
    s_mov_b32 s21, s7
    s_mov_b32 s22, 0x1000000
    s_mov_b32 s23, 0x20000
    s_mov_b32 s24, s8
    s_mov_b32 s25, s9
    s_mov_b32 s26, 0x1000000
    s_mov_b32 s27, 0x20000
    """)
    stamp(A, "ready", 2)
    def issueKV(n):
        isV = n >= 8
        c = n & 7
        srd = "s[24:27]" if isV else "s[20:23]"
        A(f"s_add_u32 s28, s44, {c*16384}")
        A(f"s_and_b32 s28, s28, 0x1ffff")
        A(f"s_add_u32 s28, s28, s40")
        A(f"s_add_u32 m0, s43, {KV_SLOT[c]}")
        A(f"s_add_u32 s29, s28, 4096")
        for j in range(4):
            vo = 8 if isV else 10 + j
            A(f"buffer_load_dwordx4 v{vo}, {srd}, s28 offen offset:{j*1024} {P['kv_aux']} lds")
        A(f"s_add_u32 m0, s43, {KV_SLOT[c] + 4096}")
        A("s_nop 0")
        for j in range(4):
            vo = 8 if isV else 10 + j
            A(f"buffer_load_dwordx4 v{vo}, {srd}, s29 offen offset:{j*1024} {P['kv_aux']} lds")
    ks = [int(x) for x in P["ksched"].split(",")]
    issued = 0
    while issued < 5 and ks[issued] == 0:
        issueKV(issued); issued += 1
    for bi in range(NBAR):
        need = None
        if 9 <= bi <= 16: need = bi - 9
        elif 17 <= bi <= 24: need = bi - 17 + 8
        if need is not None:
            assert issued > need
            A(f"s_waitcnt vmcnt({(issued-1-need)*8})")
            if need in (0, 7, 8, 11, 12, 15): stamp(A, f"tile{need}", 2)
        A("s_barrier")
        while issued < 5 and ks[issued] - 1 <= bi:
            issueKV(issued); issued += 1
        if bi == 9:
            while issued < 8:
                issueKV(issued); issued += 1
        if bi >= 10 and issued < 16 and issued - 8 <= bi - 10:
            issueKV(issued); issued += 1
    stamp_write(A, 2, 384)
    A("s_endpgm")

    A.align(6)
    A.label("K_compute")
    if P["prefetch"]:
        A("s_getpc_b64 s[36:37]")
        A.label("K_pc")
        A(f"""
        s_sub_u32 s36, s36, (K_pc-{kn})
        s_subb_u32 s37, s37, 0
        v_lshlrev_b32 v250, 7, v0
        v_mov_b32 v251, s37
        v_add_co_u32 v250, vcc, s36, v250
        s_nop 1
        v_addc_co_u32 v251, vcc, 0, v251, vcc
        v_cmp_gt_u32 vcc, (K_codeend-{kn}+127)/128, v0
        s_and_saveexec_b64 s[38:39], vcc
        s_cbranch_execz K_nopf
        global_load_dword v252, v[250:251], off
        """)
        A.label("K_nopf")
        A("s_mov_b64 exec, s[38:39]")
    A(f"""
    s_memrealtime s[48:49]
    s_waitcnt lgkmcnt(0)
    s_or_b32 s48, s48, 1
    s_cmp_lg_u32 s16, 0
    s_cbranch_scc1 K_nononce
    v_mov_b32 v246, s48
    v_mov_b32 v247, 0
    v_mov_b32 v248, 0
    v_cmp_eq_u32 vcc, 0, v2
    s_and_saveexec_b64 s[38:39], vcc
    global_atomic_cmpswap v246, v248, v[246:247], s[32:33] sc0
    s_mov_b64 exec, s[38:39]
    """)
    A.label("K_nononce")
    A("""
    s_and_b32 s30, s16, 1          ; qb
    s_lshr_b32 s29, s16, 1
    s_mov_b32 s47, s29
    v_and_b32 v3, 31, v2           ; q
    v_lshrrev_b32 v4, 5, v2        ; h
    v_lshrrev_b32 v5, 4, v2        ; g
    v_and_b32 v6, 15, v2           ; i
    v_lshrrev_b32 v7, 2, v6        ; r4
    v_and_b32 v8, 3, v2            ; c
    s_lshl_b32 s28, s30, 5
    v_add_u32 v9, s28, v3          ; row
    v_lshrrev_b32 v10, 1, v9
    v_and_b32 v10, 7, v10
    v_xor_b32 v10, v4, v10
    v_lshlrev_b32 v10, 4, v10
    v_lshl_add_u32 v10, v9, 7, v10
    v_lshrrev_b32 v13, 1, v5
    v_lshl_add_u32 v13, v13, 3, v7
    v_lshlrev_b32 v13, 8, v13
    v_and_b32 v14, 1, v5
    v_lshl_add_u32 v13, v14, 5, v13
    v_and_b32 v14, 1, v8
    v_lshl_add_u32 v15, v14, 4, v13
    v_lshrrev_b32 v14, 1, v8
    v_lshl_add_u32 v15, v14, 3, v15
    s_lshl_b32 s28, s47, 1
    v_xor_b32 v14, s28, v7
    v_lshl_add_u32 v11, v14, 6, v15
    v_xor_b32 v14, 1, v14
    v_lshl_add_u32 v12, v14, 6, v15
    """)
    for ks_ in range(4):
        A(f"v_xor_b32 v{64+ks_}, {ks_<<5}, v10")
        A(f"v_add_u32 v{64+ks_}, {X_SLOT[0]}, v{64+ks_}")
    A(f"v_add_u32 v68, {WQ_SLOT[0]}, v11")
    A(f"v_add_u32 v69, {WQ_SLOT[0]}, v12")
    nb = [0]
    def bar():
        A("s_barrier")
        if nb[0] in (0, 9, 17, 25): stamp(A, f"B{nb[0]}", 0)
        if P["stamps"] and nb[0] == P["cyc0"]: A("s_memtime s[92:93]")
        if P["stamps"] and nb[0] == P["cyc1"]: A("s_memtime s[94:95]")
        nb[0] += 1
    for c in range(9):
        bar()
        sl = c % 3
        def rd(ks):
            L = [f"ds_read_b128 v[{48+4*ks}:{51+4*ks}], v{64+ks} offset:{sl*8192}"]
            for tt in range(2):
                for sec in range(2):
                    d = 16 + tt*16 + ks*4 + sec*2
                    L.append(f"ds_read_b64_tr_b16 v[{d}:{d+1}], v{68+tt} offset:{sl*16384 + (16*ks+4*sec)*256}")
            return L
        def mm(ks):
            L = []
            for tt in range(2):
                acc = 128 + 16*tt
                cin = "0" if (c == 0 and ks == 0) else f"v[{acc}:{acc+15}]"
                L.append(f"v_mfma_f32_32x32x16_bf16 v[{acc}:{acc+15}], v[{16+tt*16+ks*4}:{19+tt*16+ks*4}], v[{48+4*ks}:{51+4*ks}], {cin}")
            return L
        for x in rd(0) + rd(1) + rd(2): A(x)
        A("s_waitcnt lgkmcnt(10)")
        m = mm(0); r3 = rd(3)
        A(m[0]); [A(x) for x in r3[:3]]; A(m[1]); [A(x) for x in r3[3:]]
        A("s_waitcnt lgkmcnt(10)"); [A(x) for x in mm(1)]
        A("s_waitcnt lgkmcnt(5)"); [A(x) for x in mm(2)]
        A("s_waitcnt lgkmcnt(0)"); [A(x) for x in mm(3)]
    A(f"""
    s_lshl_b32 s28, s47, 5
    v_add_u32 v10, s28, v3
    v_and_b32 v11, 15, v10
    v_xor_b32 v11, v4, v11
    v_lshlrev_b32 v11, 4, v11
    v_lshl_add_u32 v10, v10, 8, v11
    v_lshlrev_b32 v9, 4, v2              ; lane*16
    s_lshl_b32 s28, s16, 12
    v_add_u32 v13, s28, v9
    v_add_u32 v13, {QX}, v13
    s_lshl_b32 s28, s30, 12
    v_add_u32 v12, s28, v9
    v_add_u32 v12, {QX}, v12
    s_waitcnt vmcnt(0)
    """)
    for s in range(8):
        A(f"v_xor_b32 v{80+s}, {s<<5}, v10")
    for s in range(8):
        A(f"v_add_u32 v{88+s}, 65536, v{80+s}")
    A(f"""
    s_cmp_lg_u32 s16, 0
    s_cbranch_scc1 K_nononce2
    v_cmp_eq_u32 vcc, 0, v246
    v_mov_b32 v247, s48
    s_nop 0
    v_cndmask_b32 v246, v246, v247, vcc
    v_mov_b32 v247, {NX}
    v_cmp_eq_u32 vcc, 0, v2
    s_and_saveexec_b64 s[38:39], vcc
    ds_write_b32 v247, v246
    s_mov_b64 exec, s[38:39]
    """)
    A.label("K_nononce2")
    for i in range(16):
        A(f"v_cvt_pk_bf16_f32 v{16+i}, v{128+2*i}, v{129+2*i}")
    for f in range(4):
        A(f"ds_write_b128 v13, v[{16+4*f}:{19+4*f}] offset:{f*1024}")
    A("s_waitcnt lgkmcnt(0)")
    def kreads(c):
        buf = 16 + 32*(c & 1)
        L = []
        for s in range(8):
            a = (80 if c < 4 else 88) + s
            L.append(f"ds_read_b128 v[{buf+4*s}:{buf+4*s+3}], v{a} offset:{(c&3)*16384}")
        return L
    def kmm(c):
        buf = 16 + 32*(c & 1); acc = 128 + 16*c
        L = []
        for s in range(8):
            cin = "0" if s == 0 else f"v[{acc}:{acc+15}]"
            L.append(f"v_mfma_f32_32x32x16_bf16 v[{acc}:{acc+15}], v[{buf+4*s}:{buf+4*s+3}], v[{96+4*s}:{99+4*s}], {cin}")
        return L
    def kmax(c):
        acc = 128 + 16*c
        L = []
        for s in range(8):
            if c == 0 and s == 0: L.append(f"v_max_f32 v15, v{acc}, v{acc+1}")
            else: L.append(f"v_max3_f32 v15, v15, v{acc+2*s}, v{acc+2*s+1}")
        return L
    for c in range(9):
        if c < 8:
            bar()
        if c == 0:
            for s in range(8):
                A(f"ds_read_b128 v[{96+4*s}:{99+4*s}], v12 offset:{(s>>2)*8192+(s&3)*1024}")
            kr = kreads(0)
            for x in kr[:4]: A(x)
            A("s_waitcnt lgkmcnt(8)")
            for x in kr[4:]: A(x)
            A("s_waitcnt lgkmcnt(0)")
        else:
            fill = []
            if c < 8: fill += kreads(c)
            if c >= 2:
                mx = kmax(c-2)
                f2 = []
                for i in range(max(len(fill), len(mx))):
                    if i < len(fill): f2.append(fill[i])
                    if i < len(mx): f2.append(mx[i])
                fill = f2
            interleave(A, kmm(c-1), fill, lead=2 if c < 8 else 0)
            if c < 8: A("s_waitcnt lgkmcnt(0)")
    A(f"""
    v_lshrrev_b32 v66, 1, v5
    v_lshl_add_u32 v66, v66, 2, v7
    s_lshl_b32 s28, s47, 5
    v_add_u32 v66, s28, v66
    v_lshlrev_b32 v66, 8, v66
    v_and_b32 v67, 1, v5
    v_lshl_add_u32 v66, v67, 5, v66
    v_lshl_add_u32 v66, v8, 3, v66
    s_lshl_b32 s28, s47, 1
    v_xor_b32 v67, s28, v7
    """)
    for u in range(4):
        A(f"v_xor_b32 v68, {u}, v67")
        A(f"v_lshl_add_u32 v{3+u}, v68, 6, v66")
    A(f"""
    v_lshlrev_b32 v9, 2, v2
    s_lshl_b32 s28, s16, 8
    v_add_u32 v13, s28, v9
    v_add_u32 v13, {MX}, v13
    s_xor_b32 s28, s16, 2
    s_lshl_b32 s28, s28, 8
    v_add_u32 v14, s28, v9
    v_add_u32 v14, {MX}, v14
    v_mov_b32 v8, 0x3f803f80
    v_mov_b32 v9, 0x3f803f80
    v_mov_b32 v10, 0x3f803f80
    v_mov_b32 v11, 0x3f803f80
    s_mov_b32 s40, {f32bits(SCALE):#x}
    """)
    for x in kmax(7): A(x)
    A(f"""
    v_mov_b32 v12, v15
    s_nop 1
    v_permlane32_swap_b32 v15, v12
    s_nop 1
    v_max_f32 v7, v15, v12
    ds_write_b32 v13, v7
    s_waitcnt lgkmcnt(0)
    """)
    def exps(c, ks):
        sacc = 128 + 16*c + 8*ks
        L = []
        for j in range(8): L.append(f"v_fma_f32 v{sacc+j}, v{sacc+j}, s40, v7")
        for j in range(8): L.append(f"v_exp_f32 v{sacc+j}, v{sacc+j}")
        for j in range(4): L.append(f"v_cvt_pk_bf16_f32 v{sacc+j}, v{sacc+2*j}, v{sacc+2*j+1}")
        return L
    def vreads(c, ks):
        L = []
        for u in range(4):
            a = (3 if c < 4 else 12) + u
            for sec in range(2):
                d = 96 + ks*16 + u*4 + sec*2
                L.append(f"ds_read_b64_tr_b16 v[{d}:{d+1}], v{a} offset:{(c&3)*16384 + (16*ks+8*sec)*256}")
        return L
    def vmm(c, ks):
        pb = 128 + 16*c + 8*ks
        L = []
        for u in range(4):
            acc = 16 + 16*u
            cin = "0" if (c == 0 and ks == 0) else f"v[{acc}:{acc+15}]"
            L.append(f"v_mfma_f32_32x32x16_bf16 v[{acc}:{acc+15}], v[{96+ks*16+u*4}:{99+ks*16+u*4}], v[{pb}:{pb+3}], {cin}")
        cin = "0" if (c == 0 and ks == 0) else "v[80:95]"
        L.append(f"v_mfma_f32_32x32x16_bf16 v[80:95], v[8:11], v[{pb}:{pb+3}], {cin}")
        return L
    lead = P["explead"]
    expq = [(c, ks) for c in range(8) for ks in range(2)]
    ei = 0
    for c in range(8):
        bar()
        pre = []
        if c == 0:
            A(f"""
            v_mov_b32 v13, {NX}
            ds_read_b32 v12, v14
            ds_read_b32 v13, v13
            s_waitcnt lgkmcnt(0)
            v_readfirstlane_b32 s50, v13
            v_max_f32 v7, v7, v12
            v_mul_f32 v7, s40, v7
            v_sub_f32 v7, 0, v7
            """)
            for u in range(4): A(f"v_add_u32 v{12+u}, 65536, v{3+u}")
            for x in vreads(0, 0): A(x)
            while ei < lead:
                for x in exps(*expq[ei]): A(x)
                ei += 1
            A("s_waitcnt lgkmcnt(4)")
            for x in vreads(0, 1): A(x)
            A("s_waitcnt lgkmcnt(8)")
            fill = []
            if ei < 16: fill = exps(*expq[ei]); ei += 1
            interleave(A, vmm(0, 0), fill)
            A("s_waitcnt lgkmcnt(0)")
        else:
            fill = vreads(c, 0)
            if ei < 16: fill = fill + exps(*expq[ei]); ei += 1
            interleave(A, vmm(c-1, 1), fill, lead=4)
            fill = vreads(c, 1)
            if ei < 16: fill = fill + exps(*expq[ei]); ei += 1
            for x in fill[:4]: A(x)
            A("s_waitcnt lgkmcnt(4)")
            interleave(A, vmm(c, 0), fill[4:])
            A("s_waitcnt lgkmcnt(0)")
    for x in vmm(7, 1): A(x)
    assert ei == 16
    LX = 110592
    A(f"""
    v_lshlrev_b32 v3, 4, v2
    s_lshl_b32 s28, s16, 13
    v_add_u32 v4, s28, v3
    v_add_u32 v4, {QX}, v4
    s_xor_b32 s29, s16, 2
    s_lshl_b32 s28, s29, 13
    v_add_u32 v5, s28, v3
    v_add_u32 v5, {QX}, v5
    v_lshlrev_b32 v6, 2, v2
    s_lshl_b32 s28, s16, 8
    v_add_u32 v7, s28, v6
    v_add_u32 v7, {LX}, v7
    s_lshl_b32 s28, s29, 8
    v_add_u32 v6, s28, v6
    v_add_u32 v6, {LX}, v6
    """)
    A.nop(4)
    for i in range(8):
        if i == 4: A.nop(4)
        A(f"ds_write_b128 v4, v[{48+4*i}:{51+4*i}] offset:{i*1024}")
    A("ds_write_b32 v7, v80")
    A(f"""
    v_bfe_u32 v9, v2, 4, 1
    v_lshlrev_b32 v9, 10, v9
    v_lshrrev_b32 v10, 5, v2
    v_lshl_add_u32 v9, v10, 8, v9
    v_and_b32 v10, 15, v2
    v_lshl_add_u32 v9, v10, 4, v9
    s_lshl_b32 s28, s30, 11
    s_lshl_b32 s29, s47, 13
    s_add_u32 s28, s28, s29
    s_lshl_b32 s29, s17, 5
    s_add_u32 s29, s29, s18
    s_lshl_b32 s29, s29, 14
    s_add_u32 s42, s28, s29
    s_add_u32 s43, s42, 4096
    s_mov_b32 s20, s34
    s_mov_b32 s21, s35
    s_mov_b32 s22, {WS_SIZE}
    s_mov_b32 s23, 0x20000
    s_waitcnt lgkmcnt(0)
    """)
    bar()
    for i in range(8):
        A(f"ds_read_b128 v[{96+4*i}:{99+4*i}], v5 offset:{i*1024}")
    A("ds_read_b32 v8, v6")
    A("s_waitcnt lgkmcnt(0)")
    bar()
    A("v_add_f32 v8, v8, v80")
    A("v_rcp_f32 v8, v8")
    for i in range(32):
        A(f"v_add_f32 v{16+i}, v{16+i}, v{96+i}")
    for u in range(2):
        for a1 in range(2):
            for r in range(8):
                x = 16 + u*16 + a1*8 + r
                A(f"v_mul_f32 v{x}, v{x}, v8")
            d = 48 + u*8 + a1*4
            for r in range(4):
                x = 16 + u*16 + a1*8 + 2*r
                A(f"v_cvt_pk_bf16_f32 v{d+r}, v{x}, v{x+1}")
            A(f"buffer_store_dwordx4 v[{d}:{d+3}], v9, s[20:23], s{42+u} offen offset:{a1*512} sc1")
    A(f"""
    s_lshl_b32 s28, s17, 3
    s_add_u32 s28, s28, s19
    s_lshl_b32 s28, s28, 7
    s_add_u32 s44, s28, {WS_FLAG1}
    s_lshl_b32 s28, s31, 2
    s_add_u32 s28, s28, s16
    s_lshl_b32 s28, s28, 2
    v_mov_b32 v10, s28
    v_mov_b32 v11, s50
    v_lshlrev_b32 v12, 2, v2
    s_waitcnt vmcnt(0)
    v_cmp_eq_u32 vcc, 0, v2
    s_and_saveexec_b64 s[38:39], vcc
    buffer_store_dword v11, v10, s[20:23], s44 offen sc1
    s_mov_b64 exec, s[38:39]
    """)
    stamp(A, "O stored", 0)
    A(f"""
    v_lshrrev_b32 v13, 5, v2
    v_lshlrev_b32 v13, 4, v13
    v_bfe_u32 v14, v2, 4, 1
    v_lshl_add_u32 v13, v14, 2, v13
    v_bfe_u32 v14, v2, 2, 2
    v_add_u32 v13, v13, v14
    v_mul_u32_u24 v13, 288, v13
    v_and_b32 v14, 3, v2
    v_lshl_add_u32 v13, v14, 3, v13
    s_lshl_b32 s28, s47, 7
    v_add_u32 v13, s28, v13
    v_add_u32 v14, 65536, v13
    v_add_u32 v15, 131072, v13
    v_lshlrev_b32 v3, 4, v2            ; lane*16
    s_lshl_b32 s42, s17, 5
    s_lshl_b32 s28, s19, 2
    s_add_u32 s42, s42, s28
    s_lshl_b32 s42, s42, 14
    s_lshl_b32 s28, s30, 11
    s_add_u32 s42, s42, s28
    """)
    def poll(nlanes, soff, tag):
        lab = f"K_poll{tag}"; done = f"K_polldone{tag}"
        A(f"""
        s_mov_b32 s45, 0
        v_cmp_gt_u32 vcc, {nlanes}, v2
        s_and_b64 s[38:39], vcc, exec
        """)
        A.label(lab)
        A(f"""
        s_mov_b64 exec, s[38:39]
        buffer_load_dword v10, v12, s[20:23], {soff} offen sc1
        s_waitcnt vmcnt(0)
        v_cmp_ne_u32 vcc, s50, v10
        s_mov_b64 exec, -1
        s_cmp_eq_u64 vcc, 0
        s_cbranch_scc1 {done}
        s_add_u32 s45, s45, 1
        s_cmp_gt_u32 s45, 0x40000
        s_cbranch_scc1 {done}
        s_sleep {P['sleep']}
        s_branch {lab}
        """)
        A.label(done)
    poll(16, "s44", 1)
    stamp(A, "flags1", 0)
    for T in range(16):
        A(f"s_add_u32 s28, s42, {(T>>2)*16384 + (T&3)*4096}")
        for qq in range(2):
            d = 128 + (T*2+qq)*4
            A(f"buffer_load_dwordx4 v[{d}:{d+3}], v3, s[20:23], s28 offen offset:{qq*1024} sc1")
    bar()
    def wreads(T):
        buf = 16 + (T & 1) * 20
        L = []
        for u in range(5):
            for sec in range(2):
                off = (32*T + 8*sec)*288 + 32*u
                base = 13 + off // 65536
                d = buf + u*4 + sec*2
                L.append(f"ds_read_b64_tr_b16 v[{d}:{d+1}], v{base} offset:{off % 65536}")
        return L
    def wmm(T):
        buf = 16 + (T & 1) * 20
        L = []
        for u in range(5):
            for qq in range(2):
                acc = 64 + (u*2+qq)*4
                cin = "0" if T == 0 else f"v[{acc}:{acc+3}]"
                b = 128 + (T*2+qq)*4
                L.append(f"v_mfma_f32_16x16x32_bf16 v[{acc}:{acc+3}], v[{buf+u*4}:{buf+u*4+3}], v[{b}:{b+3}], {cin}")
        return L
    for x in wreads(0): A(x)
    for T in range(16):
        A(f"s_waitcnt vmcnt({30-2*T}) lgkmcnt(0)")
        fill = wreads(T+1) if T < 15 else []
        interleave(A, wmm(T), fill)
    stamp(A, "oproj done", 0)
    A(f"""
    s_lshl_b32 s28, s19, 3
    s_add_u32 s28, s28, s17
    s_lshl_b32 s28, s28, 2
    s_add_u32 s28, s28, s31
    s_mul_i32 s28, s28, 36864
    s_add_u32 s28, s28, {WS_PART}
    s_lshl_b32 s29, s47, 14
    s_add_u32 s28, s28, s29
    s_lshl_b32 s29, s30, 11
    s_add_u32 s28, s28, s29
    s_lshl_b32 s29, s17, 2
    s_add_u32 s29, s29, s31
    s_lshl_b32 s29, s29, 7
    s_add_u32 s44, s29, {WS_FLAG2}
    s_lshl_b32 s29, s19, 2
    s_add_u32 s29, s29, s16
    s_lshl_b32 s29, s29, 2
    v_mov_b32 v10, s29
    v_mov_b32 v11, s50
    """)
    A.nop(2)
    for u in range(5):
        A(f"s_add_u32 s29, s28, {u*4096}")
        for qq in range(2):
            acc = 64 + (u*2+qq)*4
            A(f"buffer_store_dwordx4 v[{acc}:{acc+3}], v3, s[20:23], s29 offen offset:{qq*1024} sc1")
    A(f"""
    s_waitcnt vmcnt(0)
    v_cmp_eq_u32 vcc, 0, v2
    s_and_saveexec_b64 s[38:39], vcc
    buffer_store_dword v11, v10, s[20:23], s44 offen sc1
    s_mov_b64 exec, s[38:39]
    """)
    stamp(A, "part stored", 0)
    A("s_branch K_final")
    A.label("K_nonce_read")
    A(f"""
    s_mov_b32 s20, s34
    s_mov_b32 s21, s35
    s_mov_b32 s22, {WS_SIZE}
    s_mov_b32 s23, 0x20000
    s_lshl_b32 s29, s17, 2
    s_add_u32 s29, s29, s31
    s_lshl_b32 s29, s29, 7
    s_add_u32 s44, s29, {WS_FLAG2}
    v_lshlrev_b32 v12, 2, v2
    """)
    A.label("K_final")
    A(f"""
    s_lshl_b32 s28, s16, 6
    v_add_u32 v4, s28, v2              ; t
    v_lshrrev_b32 v5, 5, v4            ; nt
    v_bfe_u32 v6, v4, 3, 2             ; g
    v_and_b32 v7, 7, v4                ; r
    v_lshlrev_b32 v8, 12, v5
    v_lshl_add_u32 v8, v6, 8, v8
    v_lshl_add_u32 v8, v7, 4, v8
    s_lshr_b32 s28, s19, 1
    s_lshl_b32 s28, s28, 10
    s_and_b32 s29, s19, 1
    s_lshl_b32 s29, s29, 7
    s_add_u32 s28, s28, s29
    s_lshl_b32 s29, s17, 2
    s_add_u32 s29, s29, s31
    s_mul_i32 s29, s29, 36864
    s_add_u32 s28, s28, s29
    s_add_u32 s42, s28, {WS_PART}      ; + j'*32*36864
    v_mul_u32_u24 v9, 1152, v7
    v_lshl_add_u32 v9, v5, 5, v9
    v_lshl_add_u32 v9, v6, 3, v9
    s_lshl_b32 s28, s17, 6
    s_lshl_b32 s29, s19, 3
    s_add_u32 s28, s28, s29
    s_mul_i32 s28, s28, 1152
    s_mul_i32 s29, s31, 288
    s_add_u32 s43, s28, s29
    s_mov_b32 s24, s14
    s_mov_b32 s25, s15
    s_mov_b32 s26, {8*64*576*2}
    s_mov_b32 s27, 0x20000
    """)
    poll(32, "s44", 2)
    stamp(A, "flags2", 0)
    A(f"""
    v_cmp_gt_u32 vcc, 288, v4
    s_and_saveexec_b64 s[38:39], vcc
    s_cbranch_execz K_fin_done
    """)
    for j in range(8):
        A(f"s_add_u32 s28, s42, {j*32*36864}")
        A(f"buffer_load_dwordx4 v[{16+4*j}:{19+4*j}], v8, s[20:23], s28 offen sc1")
    for j in range(1, 8):
        A(f"s_waitcnt vmcnt({7-j})")
        for r in range(4):
            A(f"v_add_f32 v{16+r}, v{16+r}, v{16+4*j+r}")
    A("""
    v_cvt_pk_bf16_f32 v10, v16, v17
    v_cvt_pk_bf16_f32 v11, v18, v19
    buffer_store_dwordx2 v[10:11], v9, s[24:27], s43 offen
    """)
    A.label("K_fin_done")
    A("s_mov_b64 exec, s[38:39]")
    if P["stamps"]:
        A("s_cmp_eq_u32 s16, 4")
        A("s_cbranch_scc1 K_st4")
        stamp_write(A, 0, 0)
        A("s_endpgm")
        A.label("K_st4")
    A.label("K_end")
    A("s_endpgm")
    A.label("K_codeend")

A = Asm()
hdr = f"""; generated by gen2.py  {' '.join(sys.argv[2:])}
; @launch grid=(256,1,1) block=(512,1,1) lds=163840
.amdgcn_target "amdgcn-amd-amdhsa--gfx950"
.text
"""
kernel(A)
out = hdr + A.text() + '.section .rodata,"a"\n' + kernel_desc(NAME + "_kernel")
open(sys.argv[1], "w").write(out)
```

```python
import sys, math, struct
from asmlib import *

NAME = "standalone__gqa_block_cached__near_ridge"
P = dict(kv_aux="", w_aux="", wo_aux="", stamps=False, prefetch=True, rot=True,
         ksched="0,0,1,3,5",
         explead=2, sleep=1, cyc0=17, cyc1=25, dbgspan=False)
for a in sys.argv[2:]:
    k, v = a.split("=")
    P[k] = type(P[k])(eval(v)) if not isinstance(P[k], str) else v

WS_O = 0
WS_PART = 0x400000
WS_FLAG1 = 0x1000000
WS_FLAG2 = 0x1010000
WS_STAMP = 0x2000000
WS_SIZE = 0x4000000

SLOT = 16384
KV_SLOT = [i * SLOT for i in range(8)]
WQ_SLOT = [5 * SLOT, 6 * SLOT, 7 * SLOT]
X_SLOT = [131072, 131072 + 8192, 131072 + 16384]
QX = 131072
MX = 131072 + 24576
NX = MX + 1024
SCALE = math.log2(math.e) / math.sqrt(128.0)
def f32bits(x): return struct.unpack("<I", struct.pack("<f", x))[0]

NBAR = 28
STAMPS = []
def stamp(A, name, role):
    if not P["stamps"]: return
    lst = STAMPS_BY_ROLE.setdefault(role, [])
    k = len(lst)
    assert k < 13, "too many stamps"
    lst.append(name)
    A(f"s_memrealtime s[{64+2*k}:{65+2*k}]")
STAMPS_BY_ROLE = {}

def stamp_write(A, role, tid):
    if not P["stamps"]: return
    n = len(STAMPS_BY_ROLE.get(role, []))
    A("s_waitcnt vmcnt(0)")
    A("s_memrealtime s[62:63]")
    A("s_waitcnt lgkmcnt(0)")
    A(f"""
    s_lshl_b32 s28, s2, 6
    s_add_u32 s28, s28, {WS_STAMP + role*0x10000}
    v_mov_b32 v20, s28
    s_sub_u32 s94, s94, s92
    v_mov_b32 v24, s94
    v_mov_b32 v25, s60
    v_mov_b32 v26, s62
    """)
    for k in range(13):
        A(f"v_mov_b32 v{27+k}, s{64+2*k}" if k < n else f"v_mov_b32 v{27+k}, 0")
    lab = A.newlabel("sk")
    A(f"""
    v_cmp_eq_u32 vcc, {tid}, v0
    s_and_saveexec_b64 s[38:39], vcc
    s_cbranch_execz {lab}
    global_store_dwordx4 v20, v[24:27], s[34:35]
    global_store_dwordx4 v20, v[28:31], s[34:35] offset:16
    global_store_dwordx4 v20, v[32:35], s[34:35] offset:32
    global_store_dwordx4 v20, v[36:39], s[34:35] offset:48
    """)
    A.label(lab)
    A("s_mov_b64 exec, s[38:39]")

def interleave(A, mf, fill, lead=0):
    n = len(mf)
    k = 0
    for _ in range(lead):
        if k < len(fill): A(fill[k]); k += 1
    rem = len(fill) - k
    for i, m in enumerate(mf):
        A(m)
        tgt = lead + (rem * (i + 1) + n - 1) // n
        while k < min(tgt, len(fill)):
            A(fill[k]); k += 1
    while k < len(fill):
        A(fill[k]); k += 1

def kernel(A):
    kn = NAME + "_kernel"
    A(f".globl {kn}\n.p2align 8\n.type {kn},@function\n{kn}:")
    if P["stamps"]: A("s_memrealtime s[60:61]")
    A("""
    s_load_dwordx4 s[4:7], s[0:1], 0
    s_load_dwordx4 s[8:11], s[0:1], 16
    s_load_dwordx4 s[12:15], s[0:1], 32
    s_load_dwordx4 s[32:35], s[0:1], 48
    v_lshrrev_b32 v1, 6, v0
    v_and_b32 v2, 63, v0
    s_cmp_ge_u32 s2, 256
    v_readfirstlane_b32 s16, v1
    s_cbranch_scc1 K_end
    s_and_b32 s19, s2, 7           ; j
    s_lshr_b32 s28, s2, 3
    s_and_b32 s31, s28, 3          ; i
    s_lshl_b32 s18, s19, 2
    s_add_u32 s18, s18, s31        ; hq
    s_lshr_b32 s17, s2, 5          ; b
    s_cmp_lt_u32 s16, 4
    s_cbranch_scc1 K_compute
    s_cmp_ge_u32 s16, 6
    s_cbranch_scc1 K_kvloader
    """)
    A(f"""
    s_sub_u32 s30, s16, 4              ; wa
    v_lshrrev_b32 v5, 3, v2
    v_mul_u32_u24 v5, 1152, v5
    v_and_b32 v6, 7, v2
    v_lshrrev_b32 v7, 4, v2
    v_xor_b32 v6, v6, v7
    v_lshl_add_u32 v3, v6, 4, v5       ; par 0
    v_xor_b32 v6, 4, v6
    v_lshl_add_u32 v4, v6, 4, v5       ; par 1
    v_add_u32 v5, 16384, v3
    v_add_u32 v6, 24576, v4
    v_add_u32 v4, 8192, v4
    v_and_b32 v16, 15, v2
    v_lshlrev_b32 v17, 2, v7
    v_xor_b32 v16, v16, v17
    v_lshlrev_b32 v16, 4, v16
    v_lshl_add_u32 v8, v7, 13, v16
    """)
    for jj in range(1, 8):
        A(f"v_add_u32 v{8+jj}, {32768*jj - 1024*(jj&3)}, v8")
    A(f"""
    s_mul_i32 s40, s17, 73728
    s_mul_i32 s28, s30, {32*1152}
    s_add_u32 s40, s40, s28
    s_lshl_b32 s41, s18, 8
    s_lshl_b32 s28, s30, 18
    s_add_u32 s41, s41, s28
    s_lshl_b32 s42, s30, 12
    s_add_u32 s42, s42, {X_SLOT[0]}
    s_lshl_b32 s43, s30, 13
    s_add_u32 s43, s43, {WQ_SLOT[0]}
    s_mov_b32 s44, 0
    """)
    if P["rot"]:
        A("""
        s_mul_i32 s44, s31, 3
        s_add_u32 s44, s44, s17
        s_cmp_ge_u32 s44, 9
        s_cselect_b32 s28, 9, 0
        s_sub_u32 s44, s44, s28
        s_cmp_ge_u32 s44, 9
        s_cselect_b32 s28, 9, 0
        s_sub_u32 s44, s44, s28
        s_lshl_b32 s28, s44, 7
        s_add_u32 s40, s40, s28
        s_lshl_b32 s28, s44, 19
        s_add_u32 s41, s41, s28
        """)
    A(f"""
    s_mov_b32 s45, 0
    s_mov_b32 s46, 0                   ; slot
    s_waitcnt lgkmcnt(0)
    s_mov_b32 s20, s4
    s_mov_b32 s21, s5
    s_mov_b32 s22, {8*64*576*2}
    s_mov_b32 s23, 0x20000
    s_mov_b32 s24, s10
    s_mov_b32 s25, s11
    s_mov_b32 s26, {576*4096*2}
    s_mov_b32 s27, 0x20000
    """)
    stamp(A, "ready", 1)
    A.label("A_loop")
    A("""
    s_cmp_lt_u32 s45, 2
    s_cbranch_scc1 A_issue
    s_waitcnt vmcnt(12)
    s_barrier
    """)
    A.label("A_issue")
    A("s_mov_b32 m0, s42")
    A("s_add_u32 s28, s43, 4096")
    for j in range(4):
        A(f"buffer_load_dwordx4 v{3+j}, s[20:23], s40 offen offset:{j*1024} {P['w_aux']} lds")
    A("s_mov_b32 m0, s43")
    A("s_add_u32 s44, s44, 1")
    for jj in range(4):
        A(f"buffer_load_dwordx4 v{8+jj}, s[24:27], s41 offen offset:{jj*1024} {P['w_aux']} lds")
    A("s_mov_b32 m0, s28")
    A("s_add_u32 s40, s40, 128")
    for jj in range(4, 8):
        A(f"buffer_load_dwordx4 v{8+jj}, s[24:27], s41 offen offset:{(jj&3)*1024} {P['w_aux']} lds")
    A(f"""
    s_add_u32 s41, s41, {64*8192}
    s_cmp_lt_u32 s44, 9
    s_cbranch_scc1 A_nowrap
    s_mov_b32 s44, 0
    s_sub_u32 s40, s40, {9*128}
    s_sub_u32 s41, s41, {9*64*8192}
    """)
    A.label("A_nowrap")
    A(f"""
    s_add_u32 s42, s42, 8192
    s_add_u32 s43, s43, 16384
    s_add_u32 s46, s46, 1
    s_cmp_lt_u32 s46, 3
    s_cbranch_scc1 A_nowrap2
    s_mov_b32 s46, 0
    s_sub_u32 s42, s42, {3*8192}
    s_sub_u32 s43, s43, {3*16384}
    """)
    A.label("A_nowrap2")
    A("""
    s_add_u32 s45, s45, 1
    s_cmp_lt_u32 s45, 9
    s_cbranch_scc1 A_loop
    s_waitcnt vmcnt(12)
    s_barrier
    s_waitcnt vmcnt(0)
    s_barrier
    """)
    stamp(A, "A done", 1)
    A(f"""
    s_mov_b32 s20, s12
    s_mov_b32 s21, s13
    s_mov_b32 s22, {4096*576*2}
    s_movk_i32 s28, 3641
    """)
    for n in range(9):
        A(f"""
        v_add_u32 v16, {64*n}, v2
        v_mul_lo_u32 v17, v16, s28
        v_lshrrev_b32 v17, 16, v17
        v_mul_u32_u24 v18, 18, v17
        v_sub_u32 v18, v16, v18
        v_mul_u32_u24 v17, 1152, v17
        v_lshl_add_u32 v{3+n}, v18, 4, v17
        """)
        if n & 3: A(f"v_subrev_u32 v{3+n}, {1024*(n&3)}, v{3+n}")
    A(f"""
    s_mul_i32 s40, s19, {512*1152}
    s_mul_i32 s28, s31, 288
    s_add_u32 s40, s40, s28
    s_mul_i32 s28, s30, {32*1152}
    s_add_u32 s40, s40, s28
    s_mul_i32 s41, s30, 9216
    """)
    def issueWO(pair):
        A(f"s_add_u32 s28, s40, {pair*64*1152}")
        for n in range(9):
            if n % 4 == 0:
                A(f"s_add_u32 m0, s41, {pair*2*9216 + (n//4)*4096}")
                A("s_nop 0")
            A(f"buffer_load_dwordx4 v{3+n}, s[20:23], s28 offen offset:{(n&3)*1024} {P['wo_aux']} lds")
    smax = lambda i: (9216*(i+1)-1)//16384
    need_bar = {}
    for p in range(8):
        s = smax(2*p+1)
        need_bar[p] = 18 + s if s <= 6 else 26
    for bi in range(9, NBAR):
        if bi == NBAR - 1:
            A("s_waitcnt vmcnt(0)")
        A("s_barrier")
        if bi == 17:
            A(f"v_mov_b32 v20, {NX}")
            A("ds_read_b32 v20, v20")
            A("s_waitcnt lgkmcnt(0)")
            A("v_readfirstlane_b32 s50, v20")
        for p in range(8):
            if need_bar[p] == bi: issueWO(p)
    stamp(A, "bars done", 1)
    A("s_cmp_eq_u32 s16, 4")
    A("s_cbranch_scc1 K_nonce_read")
    stamp_write(A, 1, 320)
    A("s_endpgm")

    A.label("K_kvloader")
    A(f"""
    s_sub_u32 s30, s16, 6              ; wk
    v_lshrrev_b32 v7, 4, v2
    v_and_b32 v6, 15, v2
    v_lshlrev_b32 v5, 8, v7
    v_xor_b32 v9, v6, v7
    v_lshl_add_u32 v10, v9, 4, v5
    v_xor_b32 v11, 0x40, v10
    v_xor_b32 v12, 0x80, v10
    v_xor_b32 v13, 0xc0, v10
    v_lshlrev_b32 v9, 2, v7
    v_xor_b32 v6, v6, v9
    v_lshl_add_u32 v8, v6, 4, v5
    s_lshr_b32 s28, s18, 1             ; kvh
    s_lshl_b32 s40, s17, 4
    s_add_u32 s40, s40, s28
    s_lshl_b32 s40, s40, 17
    s_lshl_b32 s43, s30, 13
    s_add_u32 s40, s40, s43
    s_and_b32 s44, s18, 1
    s_lshl_b32 s44, s44, 16
    s_waitcnt lgkmcnt(0)
    s_mov_b32 s20, s6
    s_mov_b32 s21, s7
    s_mov_b32 s22, 0x1000000
    s_mov_b32 s23, 0x20000
    s_mov_b32 s24, s8
    s_mov_b32 s25, s9
    s_mov_b32 s26, 0x1000000
    s_mov_b32 s27, 0x20000
    """)
    stamp(A, "ready", 2)
    def issueKV(n):
        isV = n >= 8
        c = n & 7
        srd = "s[24:27]" if isV else "s[20:23]"
        A(f"s_add_u32 s28, s44, {c*16384}")
        A(f"s_and_b32 s28, s28, 0x1ffff")
        A(f"s_add_u32 s28, s28, s40")
        A(f"s_add_u32 m0, s43, {KV_SLOT[c]}")
        A(f"s_add_u32 s29, s28, 4096")
        for j in range(4):
            vo = 8 if isV else 10 + j
            A(f"buffer_load_dwordx4 v{vo}, {srd}, s28 offen offset:{j*1024} {P['kv_aux']} lds")
        A(f"s_add_u32 m0, s43, {KV_SLOT[c] + 4096}")
        A("s_nop 0")
        for j in range(4):
            vo = 8 if isV else 10 + j
            A(f"buffer_load_dwordx4 v{vo}, {srd}, s29 offen offset:{j*1024} {P['kv_aux']} lds")
    ks = [int(x) for x in P["ksched"].split(",")]
    issued = 0
    while issued < 5 and ks[issued] == 0:
        issueKV(issued); issued += 1
    for bi in range(NBAR):
        need = None
        if 9 <= bi <= 16: need = bi - 9
        elif 17 <= bi <= 24: need = bi - 17 + 8
        if need is not None:
            assert issued > need
            A(f"s_waitcnt vmcnt({(issued-1-need)*8})")
            if need in (0, 7, 8, 11, 12, 15): stamp(A, f"tile{need}", 2)
        A("s_barrier")
        while issued < 5 and ks[issued] - 1 <= bi:
            issueKV(issued); issued += 1
        if bi == 9:
            while issued < 8:
                issueKV(issued); issued += 1
        if bi >= 10 and issued < 16 and issued - 8 <= bi - 10:
            issueKV(issued); issued += 1
    stamp_write(A, 2, 384)
    A("s_endpgm")

    A.align(6)
    A.label("K_compute")
    if P["prefetch"]:
        A("s_getpc_b64 s[36:37]")
        A.label("K_pc")
        A(f"""
        s_sub_u32 s36, s36, (K_pc-{kn})
        s_subb_u32 s37, s37, 0
        v_lshlrev_b32 v250, 7, v0
        v_mov_b32 v251, s37
        v_add_co_u32 v250, vcc, s36, v250
        s_nop 1
        v_addc_co_u32 v251, vcc, 0, v251, vcc
        v_cmp_gt_u32 vcc, (K_codeend-{kn}+127)/128, v0
        s_and_saveexec_b64 s[38:39], vcc
        s_cbranch_execz K_nopf
        global_load_dword v252, v[250:251], off
        """)
        A.label("K_nopf")
        A("s_mov_b64 exec, s[38:39]")
    A(f"""
    s_memrealtime s[48:49]
    s_waitcnt lgkmcnt(0)
    s_or_b32 s48, s48, 1
    s_cmp_lg_u32 s16, 0
    s_cbranch_scc1 K_nononce
    v_mov_b32 v246, s48
    v_mov_b32 v247, 0
    v_mov_b32 v248, 0
    v_cmp_eq_u32 vcc, 0, v2
    s_and_saveexec_b64 s[38:39], vcc
    global_atomic_cmpswap v246, v248, v[246:247], s[32:33] sc0
    s_mov_b64 exec, s[38:39]
    """)
    A.label("K_nononce")
    A("""
    s_and_b32 s30, s16, 1          ; qb
    s_lshr_b32 s29, s16, 1
    s_mov_b32 s47, s29
    v_and_b32 v3, 31, v2           ; q
    v_lshrrev_b32 v4, 5, v2        ; h
    v_lshrrev_b32 v5, 4, v2        ; g
    v_and_b32 v6, 15, v2           ; i
    v_lshrrev_b32 v7, 2, v6        ; r4
    v_and_b32 v8, 3, v2            ; c
    s_lshl_b32 s28, s30, 5
    v_add_u32 v9, s28, v3          ; row
    v_lshrrev_b32 v10, 1, v9
    v_and_b32 v10, 7, v10
    v_xor_b32 v10, v4, v10
    v_lshlrev_b32 v10, 4, v10
    v_lshl_add_u32 v10, v9, 7, v10
    v_lshrrev_b32 v13, 1, v5
    v_lshl_add_u32 v13, v13, 3, v7
    v_lshlrev_b32 v13, 8, v13
    v_and_b32 v14, 1, v5
    v_lshl_add_u32 v13, v14, 5, v13
    v_and_b32 v14, 1, v8
    v_lshl_add_u32 v15, v14, 4, v13
    v_lshrrev_b32 v14, 1, v8
    v_lshl_add_u32 v15, v14, 3, v15
    s_lshl_b32 s28, s47, 1
    v_xor_b32 v14, s28, v7
    v_lshl_add_u32 v11, v14, 6, v15
    v_xor_b32 v14, 1, v14
    v_lshl_add_u32 v12, v14, 6, v15
    """)
    for ks_ in range(4):
        A(f"v_xor_b32 v{64+ks_}, {ks_<<5}, v10")
        A(f"v_add_u32 v{64+ks_}, {X_SLOT[0]}, v{64+ks_}")
    A(f"v_add_u32 v68, {WQ_SLOT[0]}, v11")
    A(f"v_add_u32 v69, {WQ_SLOT[0]}, v12")
    nb = [0]
    def bar():
        A("s_barrier")
        if nb[0] in (0, 9, 17, 25): stamp(A, f"B{nb[0]}", 0)
        if P["stamps"] and nb[0] == P["cyc0"]: A("s_memtime s[92:93]")
        if P["stamps"] and nb[0] == P["cyc1"]: A("s_memtime s[94:95]")
        nb[0] += 1
    for c in range(9):
        bar()
        sl = c % 3
        def rd(ks):
            L = [f"ds_read_b128 v[{48+4*ks}:{51+4*ks}], v{64+ks} offset:{sl*8192}"]
            for tt in range(2):
                for sec in range(2):
                    d = 16 + tt*16 + ks*4 + sec*2
                    L.append(f"ds_read_b64_tr_b16 v[{d}:{d+1}], v{68+tt} offset:{sl*16384 + (16*ks+4*sec)*256}")
            return L
        def mm(ks):
            L = []
            for tt in range(2):
                acc = 128 + 16*tt
                cin = "0" if (c == 0 and ks == 0) else f"v[{acc}:{acc+15}]"
                L.append(f"v_mfma_f32_32x32x16_bf16 v[{acc}:{acc+15}], v[{16+tt*16+ks*4}:{19+tt*16+ks*4}], v[{48+4*ks}:{51+4*ks}], {cin}")
            return L
        for x in rd(0) + rd(1) + rd(2): A(x)
        A("s_waitcnt lgkmcnt(10)")
        m = mm(0); r3 = rd(3)
        A(m[0]); [A(x) for x in r3[:3]]; A(m[1]); [A(x) for x in r3[3:]]
        A("s_waitcnt lgkmcnt(10)"); [A(x) for x in mm(1)]
        A("s_waitcnt lgkmcnt(5)"); [A(x) for x in mm(2)]
        A("s_waitcnt lgkmcnt(0)"); [A(x) for x in mm(3)]
    A(f"""
    s_lshl_b32 s28, s47, 5
    v_add_u32 v10, s28, v3
    v_and_b32 v11, 15, v10
    v_xor_b32 v11, v4, v11
    v_lshlrev_b32 v11, 4, v11
    v_lshl_add_u32 v10, v10, 8, v11
    v_lshlrev_b32 v9, 4, v2              ; lane*16
    s_lshl_b32 s28, s16, 12
    v_add_u32 v13, s28, v9
    v_add_u32 v13, {QX}, v13
    s_lshl_b32 s28, s30, 12
    v_add_u32 v12, s28, v9
    v_add_u32 v12, {QX}, v12
    s_waitcnt vmcnt(0)
    """)
    for s in range(8):
        A(f"v_xor_b32 v{80+s}, {s<<5}, v10")
    for s in range(8):
        A(f"v_add_u32 v{88+s}, 65536, v{80+s}")
    A(f"""
    s_cmp_lg_u32 s16, 0
    s_cbranch_scc1 K_nononce2
    v_cmp_eq_u32 vcc, 0, v246
    v_mov_b32 v247, s48
    s_nop 0
    v_cndmask_b32 v246, v246, v247, vcc
    v_mov_b32 v247, {NX}
    v_cmp_eq_u32 vcc, 0, v2
    s_and_saveexec_b64 s[38:39], vcc
    ds_write_b32 v247, v246
    s_mov_b64 exec, s[38:39]
    """)
    A.label("K_nononce2")
    for i in range(16):
        A(f"v_cvt_pk_bf16_f32 v{16+i}, v{128+2*i}, v{129+2*i}")
    for f in range(4):
        A(f"ds_write_b128 v13, v[{16+4*f}:{19+4*f}] offset:{f*1024}")
    A("s_waitcnt lgkmcnt(0)")
    def kreads(c):
        buf = 16 + 32*(c & 1)
        L = []
        for s in range(8):
            a = (80 if c < 4 else 88) + s
            L.append(f"ds_read_b128 v[{buf+4*s}:{buf+4*s+3}], v{a} offset:{(c&3)*16384}")
        return L
    def kmm(c):
        buf = 16 + 32*(c & 1); acc = 128 + 16*c
        L = []
        for s in range(8):
            cin = "0" if s == 0 else f"v[{acc}:{acc+15}]"
            L.append(f"v_mfma_f32_32x32x16_bf16 v[{acc}:{acc+15}], v[{buf+4*s}:{buf+4*s+3}], v[{96+4*s}:{99+4*s}], {cin}")
        return L
    def kmax(c):
        acc = 128 + 16*c
        L = []
        for s in range(8):
            if c == 0 and s == 0: L.append(f"v_max_f32 v15, v{acc}, v{acc+1}")
            else: L.append(f"v_max3_f32 v15, v15, v{acc+2*s}, v{acc+2*s+1}")
        return L
    for c in range(9):
        if c < 8:
            bar()
        if c == 0:
            for s in range(8):
                A(f"ds_read_b128 v[{96+4*s}:{99+4*s}], v12 offset:{(s>>2)*8192+(s&3)*1024}")
            kr = kreads(0)
            for x in kr[:4]: A(x)
            A("s_waitcnt lgkmcnt(8)")
            for x in kr[4:]: A(x)
            A("s_waitcnt lgkmcnt(0)")
        else:
            fill = []
            if c < 8: fill += kreads(c)
            if c >= 2:
                mx = kmax(c-2)
                f2 = []
                for i in range(max(len(fill), len(mx))):
                    if i < len(fill): f2.append(fill[i])
                    if i < len(mx): f2.append(mx[i])
                fill = f2
            interleave(A, kmm(c-1), fill, lead=2 if c < 8 else 0)
            if c < 8: A("s_waitcnt lgkmcnt(0)")
    A(f"""
    v_lshrrev_b32 v66, 1, v5
    v_lshl_add_u32 v66, v66, 2, v7
    s_lshl_b32 s28, s47, 5
    v_add_u32 v66, s28, v66
    v_lshlrev_b32 v66, 8, v66
    v_and_b32 v67, 1, v5
    v_lshl_add_u32 v66, v67, 5, v66
    v_lshl_add_u32 v66, v8, 3, v66
    s_lshl_b32 s28, s47, 1
    v_xor_b32 v67, s28, v7
    """)
    for u in range(4):
        A(f"v_xor_b32 v68, {u}, v67")
        A(f"v_lshl_add_u32 v{3+u}, v68, 6, v66")
    A(f"""
    v_lshlrev_b32 v9, 2, v2
    s_lshl_b32 s28, s16, 8
    v_add_u32 v13, s28, v9
    v_add_u32 v13, {MX}, v13
    s_xor_b32 s28, s16, 2
    s_lshl_b32 s28, s28, 8
    v_add_u32 v14, s28, v9
    v_add_u32 v14, {MX}, v14
    v_mov_b32 v8, 0x3f803f80
    v_mov_b32 v9, 0x3f803f80
    v_mov_b32 v10, 0x3f803f80
    v_mov_b32 v11, 0x3f803f80
    s_mov_b32 s40, {f32bits(SCALE):#x}
    """)
    for x in kmax(7): A(x)
    A(f"""
    v_mov_b32 v12, v15
    s_nop 1
    v_permlane32_swap_b32 v15, v12
    s_nop 1
    v_max_f32 v7, v15, v12
    ds_write_b32 v13, v7
    s_waitcnt lgkmcnt(0)
    """)
    def exps(c, ks):
        sacc = 128 + 16*c + 8*ks
        L = []
        for j in range(8): L.append(f"v_fma_f32 v{sacc+j}, v{sacc+j}, s40, v7")
        for j in range(8): L.append(f"v_exp_f32 v{sacc+j}, v{sacc+j}")
        for j in range(4): L.append(f"v_cvt_pk_bf16_f32 v{sacc+j}, v{sacc+2*j}, v{sacc+2*j+1}")
        return L
    def vreads(c, ks):
        L = []
        for u in range(4):
            a = (3 if c < 4 else 12) + u
            for sec in range(2):
                d = 96 + ks*16 + u*4 + sec*2
                L.append(f"ds_read_b64_tr_b16 v[{d}:{d+1}], v{a} offset:{(c&3)*16384 + (16*ks+8*sec)*256}")
        return L
    def vmm(c, ks):
        pb = 128 + 16*c + 8*ks
        L = []
        for u in range(4):
            acc = 16 + 16*u
            cin = "0" if (c == 0 and ks == 0) else f"v[{acc}:{acc+15}]"
            L.append(f"v_mfma_f32_32x32x16_bf16 v[{acc}:{acc+15}], v[{96+ks*16+u*4}:{99+ks*16+u*4}], v[{pb}:{pb+3}], {cin}")
        cin = "0" if (c == 0 and ks == 0) else "v[80:95]"
        L.append(f"v_mfma_f32_32x32x16_bf16 v[80:95], v[8:11], v[{pb}:{pb+3}], {cin}")
        return L
    lead = P["explead"]
    expq = [(c, ks) for c in range(8) for ks in range(2)]
    ei = 0
    for c in range(8):
        bar()
        pre = []
        if c == 0:
            A(f"""
            v_mov_b32 v13, {NX}
            ds_read_b32 v12, v14
            ds_read_b32 v13, v13
            s_waitcnt lgkmcnt(0)
            v_readfirstlane_b32 s50, v13
            v_max_f32 v7, v7, v12
            v_mul_f32 v7, s40, v7
            v_sub_f32 v7, 0, v7
            """)
            for u in range(4): A(f"v_add_u32 v{12+u}, 65536, v{3+u}")
            for x in vreads(0, 0): A(x)
            while ei < lead:
                for x in exps(*expq[ei]): A(x)
                ei += 1
            A("s_waitcnt lgkmcnt(4)")
            for x in vreads(0, 1): A(x)
            A("s_waitcnt lgkmcnt(8)")
            fill = []
            if ei < 16: fill = exps(*expq[ei]); ei += 1
            interleave(A, vmm(0, 0), fill)
            A("s_waitcnt lgkmcnt(0)")
        else:
            fill = vreads(c, 0)
            if ei < 16: fill = fill + exps(*expq[ei]); ei += 1
            interleave(A, vmm(c-1, 1), fill, lead=4)
            fill = vreads(c, 1)
            if ei < 16: fill = fill + exps(*expq[ei]); ei += 1
            for x in fill[:4]: A(x)
            A("s_waitcnt lgkmcnt(4)")
            interleave(A, vmm(c, 0), fill[4:])
            A("s_waitcnt lgkmcnt(0)")
    for x in vmm(7, 1): A(x)
    assert ei == 16
    LX = 110592
    A(f"""
    v_lshlrev_b32 v3, 4, v2
    s_lshl_b32 s28, s16, 13
    v_add_u32 v4, s28, v3
    v_add_u32 v4, {QX}, v4
    s_xor_b32 s29, s16, 2
    s_lshl_b32 s28, s29, 13
    v_add_u32 v5, s28, v3
    v_add_u32 v5, {QX}, v5
    v_lshlrev_b32 v6, 2, v2
    s_lshl_b32 s28, s16, 8
    v_add_u32 v7, s28, v6
    v_add_u32 v7, {LX}, v7
    s_lshl_b32 s28, s29, 8
    v_add_u32 v6, s28, v6
    v_add_u32 v6, {LX}, v6
    """)
    A.nop(4)
    for i in range(8):
        if i == 4: A.nop(4)
        A(f"ds_write_b128 v4, v[{48+4*i}:{51+4*i}] offset:{i*1024}")
    A("ds_write_b32 v7, v80")
    A(f"""
    v_bfe_u32 v9, v2, 4, 1
    v_lshlrev_b32 v9, 10, v9
    v_lshrrev_b32 v10, 5, v2
    v_lshl_add_u32 v9, v10, 8, v9
    v_and_b32 v10, 15, v2
    v_lshl_add_u32 v9, v10, 4, v9
    s_lshl_b32 s28, s30, 11
    s_lshl_b32 s29, s47, 13
    s_add_u32 s28, s28, s29
    s_lshl_b32 s29, s17, 5
    s_add_u32 s29, s29, s18
    s_lshl_b32 s29, s29, 14
    s_add_u32 s42, s28, s29
    s_add_u32 s43, s42, 4096
    s_mov_b32 s20, s34
    s_mov_b32 s21, s35
    s_mov_b32 s22, {WS_SIZE}
    s_mov_b32 s23, 0x20000
    s_waitcnt lgkmcnt(0)
    """)
    bar()
    for i in range(8):
        A(f"ds_read_b128 v[{96+4*i}:{99+4*i}], v5 offset:{i*1024}")
    A("ds_read_b32 v8, v6")
    A("s_waitcnt lgkmcnt(0)")
    bar()
    A("v_add_f32 v8, v8, v80")
    A("v_rcp_f32 v8, v8")
    for i in range(32):
        A(f"v_add_f32 v{16+i}, v{16+i}, v{96+i}")
    for u in range(2):
        for a1 in range(2):
            for r in range(8):
                x = 16 + u*16 + a1*8 + r
                A(f"v_mul_f32 v{x}, v{x}, v8")
            d = 48 + u*8 + a1*4
            for r in range(4):
                x = 16 + u*16 + a1*8 + 2*r
                A(f"v_cvt_pk_bf16_f32 v{d+r}, v{x}, v{x+1}")
            A(f"buffer_store_dwordx4 v[{d}:{d+3}], v9, s[20:23], s{42+u} offen offset:{a1*512} sc1")
    A(f"""
    s_lshl_b32 s28, s17, 3
    s_add_u32 s28, s28, s19
    s_lshl_b32 s28, s28, 7
    s_add_u32 s44, s28, {WS_FLAG1}
    s_lshl_b32 s28, s31, 2
    s_add_u32 s28, s28, s16
    s_lshl_b32 s28, s28, 2
    v_mov_b32 v10, s28
    v_mov_b32 v11, s50
    v_lshlrev_b32 v12, 2, v2
    s_waitcnt vmcnt(0)
    v_cmp_eq_u32 vcc, 0, v2
    s_and_saveexec_b64 s[38:39], vcc
    buffer_store_dword v11, v10, s[20:23], s44 offen sc1
    s_mov_b64 exec, s[38:39]
    """)
    stamp(A, "O stored", 0)
    A(f"""
    v_lshrrev_b32 v13, 5, v2
    v_lshlrev_b32 v13, 4, v13
    v_bfe_u32 v14, v2, 4, 1
    v_lshl_add_u32 v13, v14, 2, v13
    v_bfe_u32 v14, v2, 2, 2
    v_add_u32 v13, v13, v14
    v_mul_u32_u24 v13, 288, v13
    v_and_b32 v14, 3, v2
    v_lshl_add_u32 v13, v14, 3, v13
    s_lshl_b32 s28, s47, 7
    v_add_u32 v13, s28, v13
    v_add_u32 v14, 65536, v13
    v_add_u32 v15, 131072, v13
    v_lshlrev_b32 v3, 4, v2            ; lane*16
    s_lshl_b32 s42, s17, 5
    s_lshl_b32 s28, s19, 2
    s_add_u32 s42, s42, s28
    s_lshl_b32 s42, s42, 14
    s_lshl_b32 s28, s30, 11
    s_add_u32 s42, s42, s28
    """)
    def poll(nlanes, soff, tag):
        lab = f"K_poll{tag}"; done = f"K_polldone{tag}"
        A(f"""
        s_mov_b32 s45, 0
        v_cmp_gt_u32 vcc, {nlanes}, v2
        s_and_b64 s[38:39], vcc, exec
        """)
        A.label(lab)
        A(f"""
        s_mov_b64 exec, s[38:39]
        buffer_load_dword v10, v12, s[20:23], {soff} offen sc1
        s_waitcnt vmcnt(0)
        v_cmp_ne_u32 vcc, s50, v10
        s_mov_b64 exec, -1
        s_cmp_eq_u64 vcc, 0
        s_cbranch_scc1 {done}
        s_add_u32 s45, s45, 1
        s_cmp_gt_u32 s45, 0x40000
        s_cbranch_scc1 {done}
        s_sleep {P['sleep']}
        s_branch {lab}
        """)
        A.label(done)
    poll(16, "s44", 1)
    stamp(A, "flags1", 0)
    for T in range(16):
        A(f"s_add_u32 s28, s42, {(T>>2)*16384 + (T&3)*4096}")
        for qq in range(2):
            d = 128 + (T*2+qq)*4
            A(f"buffer_load_dwordx4 v[{d}:{d+3}], v3, s[20:23], s28 offen offset:{qq*1024} sc1")
    bar()
    def wreads(T):
        buf = 16 + (T & 1) * 20
        L = []
        for u in range(5):
            for sec in range(2):
                off = (32*T + 8*sec)*288 + 32*u
                base = 13 + off // 65536
                d = buf + u*4 + sec*2
                L.append(f"ds_read_b64_tr_b16 v[{d}:{d+1}], v{base} offset:{off % 65536}")
        return L
    def wmm(T):
        buf = 16 + (T & 1) * 20
        L = []
        for u in range(5):
            for qq in range(2):
                acc = 64 + (u*2+qq)*4
                cin = "0" if T == 0 else f"v[{acc}:{acc+3}]"
                b = 128 + (T*2+qq)*4
                L.append(f"v_mfma_f32_16x16x32_bf16 v[{acc}:{acc+3}], v[{buf+u*4}:{buf+u*4+3}], v[{b}:{b+3}], {cin}")
        return L
    for x in wreads(0): A(x)
    for T in range(16):
        A(f"s_waitcnt vmcnt({30-2*T}) lgkmcnt(0)")
        fill = wreads(T+1) if T < 15 else []
        interleave(A, wmm(T), fill)
    stamp(A, "oproj done", 0)
    A(f"""
    s_lshl_b32 s28, s19, 3
    s_add_u32 s28, s28, s17
    s_lshl_b32 s28, s28, 2
    s_add_u32 s28, s28, s31
    s_mul_i32 s28, s28, 36864
    s_add_u32 s28, s28, {WS_PART}
    s_lshl_b32 s29, s47, 14
    s_add_u32 s28, s28, s29
    s_lshl_b32 s29, s30, 11
    s_add_u32 s28, s28, s29
    s_lshl_b32 s29, s17, 2
    s_add_u32 s29, s29, s31
    s_lshl_b32 s29, s29, 7
    s_add_u32 s44, s29, {WS_FLAG2}
    s_lshl_b32 s29, s19, 2
    s_add_u32 s29, s29, s16
    s_lshl_b32 s29, s29, 2
    v_mov_b32 v10, s29
    v_mov_b32 v11, s50
    """)
    A.nop(2)
    for u in range(5):
        A(f"s_add_u32 s29, s28, {u*4096}")
        for qq in range(2):
            acc = 64 + (u*2+qq)*4
            A(f"buffer_store_dwordx4 v[{acc}:{acc+3}], v3, s[20:23], s29 offen offset:{qq*1024} sc1")
    A(f"""
    s_waitcnt vmcnt(0)
    v_cmp_eq_u32 vcc, 0, v2
    s_and_saveexec_b64 s[38:39], vcc
    buffer_store_dword v11, v10, s[20:23], s44 offen sc1
    s_mov_b64 exec, s[38:39]
    """)
    stamp(A, "part stored", 0)
    A("s_branch K_final")
    A.label("K_nonce_read")
    A(f"""
    s_mov_b32 s20, s34
    s_mov_b32 s21, s35
    s_mov_b32 s22, {WS_SIZE}
    s_mov_b32 s23, 0x20000
    s_lshl_b32 s29, s17, 2
    s_add_u32 s29, s29, s31
    s_lshl_b32 s29, s29, 7
    s_add_u32 s44, s29, {WS_FLAG2}
    v_lshlrev_b32 v12, 2, v2
    """)
    A.label("K_final")
    A(f"""
    s_lshl_b32 s28, s16, 6
    v_add_u32 v4, s28, v2              ; t
    v_lshrrev_b32 v5, 5, v4            ; nt
    v_bfe_u32 v6, v4, 3, 2             ; g
    v_and_b32 v7, 7, v4                ; r
    v_lshlrev_b32 v8, 12, v5
    v_lshl_add_u32 v8, v6, 8, v8
    v_lshl_add_u32 v8, v7, 4, v8
    s_lshr_b32 s28, s19, 1
    s_lshl_b32 s28, s28, 10
    s_and_b32 s29, s19, 1
    s_lshl_b32 s29, s29, 7
    s_add_u32 s28, s28, s29
    s_lshl_b32 s29, s17, 2
    s_add_u32 s29, s29, s31
    s_mul_i32 s29, s29, 36864
    s_add_u32 s28, s28, s29
    s_add_u32 s42, s28, {WS_PART}      ; + j'*32*36864
    v_mul_u32_u24 v9, 1152, v7
    v_lshl_add_u32 v9, v5, 5, v9
    v_lshl_add_u32 v9, v6, 3, v9
    s_lshl_b32 s28, s17, 6
    s_lshl_b32 s29, s19, 3
    s_add_u32 s28, s28, s29
    s_mul_i32 s28, s28, 1152
    s_mul_i32 s29, s31, 288
    s_add_u32 s43, s28, s29
    s_mov_b32 s24, s14
    s_mov_b32 s25, s15
    s_mov_b32 s26, {8*64*576*2}
    s_mov_b32 s27, 0x20000
    """)
    poll(32, "s44", 2)
    stamp(A, "flags2", 0)
    A(f"""
    v_cmp_gt_u32 vcc, 288, v4
    s_and_saveexec_b64 s[38:39], vcc
    s_cbranch_execz K_fin_done
    """)
    for j in range(8):
        A(f"s_add_u32 s28, s42, {j*32*36864}")
        A(f"buffer_load_dwordx4 v[{16+4*j}:{19+4*j}], v8, s[20:23], s28 offen sc1")
    for j in range(1, 8):
        A(f"s_waitcnt vmcnt({7-j})")
        for r in range(4):
            A(f"v_add_f32 v{16+r}, v{16+r}, v{16+4*j+r}")
    A("""
    v_cvt_pk_bf16_f32 v10, v16, v17
    v_cvt_pk_bf16_f32 v11, v18, v19
    buffer_store_dwordx2 v[10:11], v9, s[24:27], s43 offen
    """)
    A.label("K_fin_done")
    A("s_mov_b64 exec, s[38:39]")
    if P["dbgspan"]:
        A("""
        s_waitcnt vmcnt(0)
        s_memrealtime s[52:53]
        s_waitcnt lgkmcnt(0)
        s_sub_u32 s52, s52, s50
        v_mov_b32 v10, s52
        v_mov_b32 v11, 4
        v_cmp_eq_u32 vcc, 0, v0
        s_and_saveexec_b64 s[38:39], vcc
        s_cbranch_execz K_ds_done
        global_atomic_umax v11, v10, s[32:33]
        """)
        A.label("K_ds_done")
        A("s_mov_b64 exec, s[38:39]")
    if P["stamps"]:
        A("s_cmp_eq_u32 s16, 4")
        A("s_cbranch_scc1 K_st4")
        stamp_write(A, 0, 0)
        A("s_endpgm")
        A.label("K_st4")
    A.label("K_end")
    A("s_endpgm")
    A.label("K_codeend")

A = Asm()
hdr = f"""; generated by gen2.py  {' '.join(sys.argv[2:])}
; @launch grid=(256,1,1) block=(512,1,1) lds=163840
.amdgcn_target "amdgcn-amd-amdhsa--gfx950"
.text
"""
kernel(A)
out = hdr + A.text() + '.section .rodata,"a"\n' + kernel_desc(NAME + "_kernel")
open(sys.argv[1], "w").write(out)
```

```python
import sys, math, struct
from asmlib import *

NAME = "standalone__gqa_block_cached__near_ridge"
P = dict(kv_aux="", w_aux="", wo_aux="", stamps=False, prefetch=True, rot=True,
         ksched="0,0,3,5",
         sched="9:k4,k5;10:k6,v0;11:k7,v1;12:v2;13:v3;14:rem;17:v4;18:v5;19:v6,w0;20:v7,w1;21:w2;22:w3;23:w4;26:w5,w6,w7",
         fast=True,
         explead=2, sleep=1, cyc0=17, cyc1=25, dbgspan=False, h1st='sc1', h1ld='sc1')
for a in sys.argv[2:]:
    k, v = a.split("=")
    P[k] = type(P[k])(eval(v)) if not isinstance(P[k], str) else v

WS_O = 0
WS_PART = 0x400000
WS_FLAG1 = 0x1000000
WS_FLAG2 = 0x1010000
WS_STAMP = 0x2000000
WS_SIZE = 0x4000000

SLOT = 16384
KV_SLOT = [i * SLOT for i in range(8)]
WQ_SLOT = [5 * SLOT, 6 * SLOT, 7 * SLOT]
X_SLOT = [131072, 131072 + 8192, 131072 + 16384]
QX = 131072
MX = 131072 + 24576
NX = MX + 1024
OX = 5 * 16384
LX = 147456
OWN = 147456
REM = 131072
WS_XCC = 0x1020000
SCALE = math.log2(math.e) / math.sqrt(128.0)
def f32bits(x): return struct.unpack("<I", struct.pack("<f", x))[0]
NBAR = 29

STAMPS_BY_ROLE = {}
def stamp(A, name, role):
    if not P["stamps"]: return
    lst = STAMPS_BY_ROLE.setdefault(role, [])
    k = len(lst)
    assert k < 13, "too many stamps"
    lst.append(name)
    A(f"s_memrealtime s[{64+2*k}:{65+2*k}]")

def stamp_write(A, role, tid):
    if not P["stamps"]: return
    n = len(STAMPS_BY_ROLE.get(role, []))
    A("s_waitcnt vmcnt(0)")
    A("s_memrealtime s[62:63]")
    A("s_waitcnt lgkmcnt(0)")
    A(f"""
    s_lshl_b32 s28, s2, 6
    s_add_u32 s28, s28, {WS_STAMP + role*0x10000}
    v_mov_b32 v20, s28
    s_sub_u32 s94, s94, s92
    v_mov_b32 v24, s94
    v_mov_b32 v25, s60
    v_mov_b32 v26, s62
    """)
    for k in range(13):
        A(f"v_mov_b32 v{27+k}, s{64+2*k}" if k < n else f"v_mov_b32 v{27+k}, 0")
    lab = A.newlabel("sk")
    A(f"""
    v_cmp_eq_u32 vcc, {tid}, v0
    s_and_saveexec_b64 s[38:39], vcc
    s_cbranch_execz {lab}
    global_store_dwordx4 v20, v[24:27], s[34:35]
    global_store_dwordx4 v20, v[28:31], s[34:35] offset:16
    global_store_dwordx4 v20, v[32:35], s[34:35] offset:32
    global_store_dwordx4 v20, v[36:39], s[34:35] offset:48
    """)
    A.label(lab)
    A("s_mov_b64 exec, s[38:39]")

def interleave(A, mf, fill, lead=0, per=None):
    n = len(mf); k = 0
    for _ in range(lead):
        if k < len(fill): A(fill[k]); k += 1
    rem = len(fill) - k
    for i, m in enumerate(mf):
        A(m)
        tgt = lead + ((rem * (i + 1) + n - 1) // n if per is None else per * (i + 1))
        while k < min(tgt, len(fill)):
            A(fill[k]); k += 1
    while k < len(fill):
        A(fill[k]); k += 1

def loaders(A):
    A("s_sub_u32 s30, s16, 4")
    A("""
    v_lshrrev_b32 v7, 4, v2            ; l>>4
    v_and_b32 v16, 15, v2
    s_cmp_eq_u32 s30, 3
    s_cbranch_scc1 K_kload
    s_cmp_eq_u32 s30, 0
    s_cbranch_scc1 K_xsetup
    """)
    A(f"""
    v_lshlrev_b32 v17, 2, v7
    v_xor_b32 v16, v16, v17
    v_lshlrev_b32 v16, 4, v16
    v_lshl_add_u32 v20, v7, 13, v16
    """)
    for jj in range(1, 8):
        A(f"v_add_u32 v{20+jj}, {32768*jj - 1024*(jj&3)}, v20")
    A(f"""
    s_sub_u32 s29, s30, 1
    s_lshl_b32 s40, s18, 8
    s_lshl_b32 s28, s29, 18
    s_add_u32 s40, s40, s28            ; soffset
    s_lshl_b32 s42, s29, 13
    s_add_u32 s42, s42, {WQ_SLOT[0]}
    s_mov_b32 s41, {64*8192}
    s_mov_b32 s43, 16384
    s_waitcnt lgkmcnt(0)
    s_mov_b32 s20, s10
    s_mov_b32 s21, s11
    s_mov_b32 s22, {576*4096*2}
    s_branch K_asetup
    """)
    A.label("K_xsetup")
    A(f"""
    v_lshrrev_b32 v5, 3, v2
    v_mul_u32_u24 v5, 1152, v5
    v_and_b32 v6, 7, v2
    v_xor_b32 v6, v6, v7
    v_lshl_add_u32 v20, v6, 4, v5       ; par 0
    v_xor_b32 v6, 4, v6
    v_lshl_add_u32 v21, v6, 4, v5       ; par 1
    """)
    for j in range(7, 0, -1):
        A(f"v_add_u32 v{20+j}, {9216*j - 1024*(j&3)}, v{20+(j&1)}")
    A(f"""
    s_mul_i32 s40, s17, 73728
    s_mov_b32 s42, {X_SLOT[0]}
    s_mov_b32 s41, 128
    s_mov_b32 s43, 8192
    s_waitcnt lgkmcnt(0)
    s_mov_b32 s20, s4
    s_mov_b32 s21, s5
    s_mov_b32 s22, {8*64*576*2}
    """)
    A.label("K_asetup")
    A("s_mov_b32 s23, 0x20000")
    A("s_mov_b32 s44, 0")
    if P["rot"]:
        A("""
        s_mul_i32 s44, s31, 3
        s_add_u32 s44, s44, s17
        s_cmp_ge_u32 s44, 9
        s_cselect_b32 s28, 9, 0
        s_sub_u32 s44, s44, s28
        s_mul_i32 s28, s44, s41
        s_add_u32 s40, s40, s28
        """)
    A("""
    s_mul_i32 s47, s41, 9              ; soffset wrap
    s_mul_i32 s48, s43, 3              ; lds wrap
    s_mov_b32 s45, 0
    s_mov_b32 s46, 0
    """)
    stamp(A, "ready", 1)
    A.label("A_loop")
    A("""
    s_cmp_lt_u32 s45, 2
    s_cbranch_scc1 A_issue
    s_waitcnt vmcnt(8)
    s_barrier
    """)
    A.label("A_issue")
    A("s_mov_b32 m0, s42")
    A("s_add_u32 s28, s42, 4096")
    for j in range(4):
        A(f"buffer_load_dwordx4 v{20+j}, s[20:23], s40 offen offset:{j*1024} {P['w_aux']} lds")
    A("s_mov_b32 m0, s28")
    A("s_add_u32 s44, s44, 1")
    for j in range(4, 8):
        A(f"buffer_load_dwordx4 v{20+j}, s[20:23], s40 offen offset:{(j&3)*1024} {P['w_aux']} lds")
    A("""
    s_add_u32 s40, s40, s41
    s_cmp_lt_u32 s44, 9
    s_cbranch_scc1 A_nowrap
    s_mov_b32 s44, 0
    s_sub_u32 s40, s40, s47
    """)
    A.label("A_nowrap")
    A("""
    s_add_u32 s42, s42, s43
    s_add_u32 s46, s46, 1
    s_cmp_lt_u32 s46, 3
    s_cbranch_scc1 A_nowrap2
    s_mov_b32 s46, 0
    s_sub_u32 s42, s42, s48
    """)
    A.label("A_nowrap2")
    A("""
    s_add_u32 s45, s45, 1
    s_cmp_lt_u32 s45, 9
    s_cbranch_scc1 A_loop
    """)
    kv_setup(A)
    A("""
    s_waitcnt vmcnt(8)
    s_barrier
    s_waitcnt vmcnt(0)
    s_barrier
    """)
    stamp(A, "A done", 1)
    A("s_branch K_common")

    A.label("K_kload")
    kv_setup(A)
    stamp(A, "ready", 2)
    ks = [int(x) for x in P["ksched"].split(",")]
    def issueK_full(n):
        A(f"s_add_u32 s28, s44, {n*16384}")
        A(f"s_and_b32 s28, s28, 0x1ffff")
        A(f"s_add_u32 s28, s28, s40")
        for grp in range(4):
            A(f"s_mov_b32 m0, {KV_SLOT[n] + grp*4096}")
            if grp: A(f"s_add_u32 s28, s28, 4096")
            else: A("s_nop 0")
            for j in range(4):
                A(f"buffer_load_dwordx4 v{10+j}, s[20:23], s28 offen offset:{j*1024} {P['kv_aux']} lds")
    issued = 0
    while issued < 4 and ks[issued] == 0:
        issueK_full(issued); issued += 1
    for bi in range(9):
        A("s_barrier")
        while issued < 4 and ks[issued] - 1 <= bi:
            issueK_full(issued); issued += 1
    assert issued == 4
    A.label("K_common")
    log = []
    for n in range(4): log.append((("kv", n), 16))
    def after(tag):
        idx = max(i for i, (t, c) in enumerate(log) if t == tag)
        return sum(c for t, c in log[idx+1:])
    A("s_lshl_b32 s43, s30, 12")
    A("s_add_u32 s41, s40, s43")
    def issueKV(n):
        isV = n >= 8; c = n & 7
        srd = "s[24:27]" if isV else "s[20:23]"
        A(f"s_add_u32 s28, s44, {c*16384}")
        A(f"s_and_b32 s28, s28, 0x1ffff")
        A(f"s_add_u32 m0, s43, {KV_SLOT[c]}")
        A(f"s_add_u32 s28, s28, s41")
        for j in range(4):
            vo = 8 if isV else 10 + j
            A(f"buffer_load_dwordx4 v{vo}, {srd}, s28 offen offset:{j*1024} {P['kv_aux']} lds")
        log.append((("kv", n), 4))
    def wo_setup():
        A(f"""
        s_mov_b32 s20, s12
        s_mov_b32 s21, s13
        s_mov_b32 s22, {4096*576*2}
        v_lshrrev_b32 v7, 4, v2
        v_and_b32 v6, 15, v2
        v_mul_u32_u24 v5, 1152, v7
        v_lshlrev_b32 v16, 1, v7
        v_xor_b32 v16, v6, v16             ; (l&15) ^ ((l>>4)<<1)
        v_lshl_add_u32 v20, v16, 4, v5     ; par 0
        v_xor_b32 v16, 8, v16              ; ^ (4<<1)
        v_lshl_add_u32 v21, v16, 4, v5     ; par 1
        v_add_u32 v22, {2*3584}, v20
        v_add_u32 v23, {3*3584}, v21
        v_add_u32 v21, {1*3584}, v21
        v_lshrrev_b32 v5, 1, v2
        v_mul_u32_u24 v5, 1152, v5
        v_and_b32 v6, 1, v2
        v_lshl_add_u32 v24, v6, 4, v5
        v_add_u32 v25, {1*(32*1152-1024)}, v24
        v_add_u32 v26, {2*(32*1152-1024)}, v24
        v_add_u32 v27, {3*(32*1152-1024)}, v24
        s_mul_i32 s45, s19, {512*1152}
        s_mul_i32 s28, s31, 288
        s_add_u32 s45, s45, s28            ; row0*1152 + 288*i
        s_and_b32 s29, s31, 1
        s_lshl_b32 s28, s29, 5
        s_add_u32 s46, s45, s28
        s_mul_i32 s28, s30, {16*1152}
        s_add_u32 s46, s46, s28            ; + 16 w' rows
        s_lshl_b32 s49, s31, 7
        s_xor_b32 s29, s29, 1
        s_lshl_b32 s28, s29, 8
        s_add_u32 s45, s45, s28            ; rem start
        s_add_u32 s28, s30, s31
        s_and_b32 s28, s28, 3
        s_mul_i32 s28, s28, {128*1152}
        s_add_u32 s45, s45, s28            ; + 128*((w'+i)&3) rows
        """)
    def issueWO(t):
        A(f"s_add_u32 s28, s49, {t*64}")
        A(f"s_and_b32 s28, s28, 511")
        A(f"s_mul_i32 s28, s28, 1152")
        A(f"s_add_u32 m0, s43, {KV_SLOT[t]}")
        A(f"s_add_u32 s28, s28, s46")
        for j in range(4):
            A(f"buffer_load_dwordx4 v{20+j}, s[20:23], s28 offen offset:{j*1024} {P['wo_aux']} lds")
        log.append((("wo", t), 4))
    def issueREM():
        A(f"s_add_u32 m0, s43, {REM}")
        A("s_nop 0")
        for j in range(4):
            A(f"buffer_load_dwordx4 v{24+j}, s[20:23], s45 offen offset:{j*1024} {P['wo_aux']} lds")
        log.append((("rem", 0), 4))
    sched = {}
    for part in P["sched"].split(";"):
        k, v = part.split(":"); sched[int(k)] = v.split(",")
    def earliest(it):
        if it == "rem": return 10
        n = int(it[1:])
        if it[0] == "k": return 8 if n == 4 else 9
        if it[0] == "v": return 10 + n
        if it[0] == "w": return 18 + n if n <= 4 else 26
    for k, v in sched.items():
        for it in v: assert k >= earliest(it), (k, it)
    setup_done = False
    for bi in range(9, NBAR):
        need = None
        if 9 <= bi <= 16: need = ("kv", bi - 9)
        elif 17 <= bi <= 24: need = ("kv", bi - 17 + 8)
        if need is not None:
            A(f"s_waitcnt vmcnt({min(63, after(need))})")
            if need[1] in (0, 7, 8, 11, 12, 15): stamp(A, f"tile{need[1]}", 2)
        if bi == 27:
            A(f"s_waitcnt vmcnt({min(63, after(('wo', 4)))})")
        if bi == 28:
            A("s_waitcnt vmcnt(0)")
        A("s_barrier")
        if bi == 17:
            A(f"v_mov_b32 v19, {NX}")
            A("ds_read_b32 v19, v19")
            A("s_waitcnt lgkmcnt(0)")
            A("v_readfirstlane_b32 s50, v19")
        for it in sched.get(bi, []):
            if it[0] in "wr" and not setup_done:
                assert all(any(t == ("kv", n) for t, c in log) for n in range(8)), "K tiles must be issued before wo setup"
                wo_setup(); setup_done = True
            if it == "rem": issueREM()
            elif it[0] == "k": issueKV(int(it[1:]))
            elif it[0] == "v": issueKV(8 + int(it[1:]))
            elif it[0] == "w": issueWO(int(it[1:]))
    A("s_cmp_eq_u32 s16, 4")
    A("s_cbranch_scc1 K_w4_final")
    if P["stamps"]:
        A("s_cmp_eq_u32 s16, 7")
        A("s_cbranch_scc0 K_end")
        stamp_write(A, 2, 448)
    A("s_endpgm")

def kv_setup(A):
    A(f"""
    v_lshrrev_b32 v7, 4, v2
    v_and_b32 v6, 15, v2
    v_lshlrev_b32 v5, 8, v7
    v_xor_b32 v9, v6, v7
    v_lshl_add_u32 v10, v9, 4, v5
    v_xor_b32 v11, 0x40, v10
    v_xor_b32 v12, 0x80, v10
    v_xor_b32 v13, 0xc0, v10
    v_lshlrev_b32 v9, 2, v7
    v_xor_b32 v6, v6, v9
    v_lshl_add_u32 v8, v6, 4, v5
    s_lshr_b32 s28, s18, 1
    s_lshl_b32 s40, s17, 4
    s_add_u32 s40, s40, s28
    s_lshl_b32 s40, s40, 17
    s_and_b32 s44, s18, 1
    s_lshl_b32 s44, s44, 16
    s_waitcnt lgkmcnt(0)
    s_mov_b32 s20, s6
    s_mov_b32 s21, s7
    s_mov_b32 s22, 0x1000000
    s_mov_b32 s23, 0x20000
    s_mov_b32 s24, s8
    s_mov_b32 s25, s9
    s_mov_b32 s26, 0x1000000
    s_mov_b32 s27, 0x20000
    """)

def kernel(A):
    kn = NAME + "_kernel"
    A(f".globl {kn}\n.p2align 8\n.type {kn},@function\n{kn}:")
    if P["stamps"]: A("s_memrealtime s[60:61]")
    A("""
    s_load_dwordx4 s[4:7], s[0:1], 0
    s_load_dwordx4 s[8:11], s[0:1], 16
    s_load_dwordx4 s[12:15], s[0:1], 32
    s_load_dwordx4 s[32:35], s[0:1], 48
    v_lshrrev_b32 v1, 6, v0
    v_and_b32 v2, 63, v0
    s_cmp_ge_u32 s2, 256
    v_readfirstlane_b32 s16, v1
    s_cbranch_scc1 K_end
    s_and_b32 s19, s2, 7           ; j
    s_lshr_b32 s28, s2, 3
    s_and_b32 s31, s28, 3          ; i
    s_lshl_b32 s18, s19, 2
    s_add_u32 s18, s18, s31        ; hq
    s_lshr_b32 s17, s2, 5          ; b
    s_cmp_lt_u32 s16, 4
    s_cbranch_scc1 K_compute
    """)
    loaders(A)
    compute(A, kn)

def compute(A, kn):
    A.align(6)
    A.label("K_compute")
    if P["prefetch"]:
        A("s_getpc_b64 s[36:37]")
        A.label("K_pc")
        A(f"""
        s_sub_u32 s36, s36, (K_pc-{kn})
        s_subb_u32 s37, s37, 0
        v_lshlrev_b32 v250, 7, v0
        v_mov_b32 v251, s37
        v_add_co_u32 v250, vcc, s36, v250
        s_nop 1
        v_addc_co_u32 v251, vcc, 0, v251, vcc
        v_cmp_gt_u32 vcc, (K_codeend-{kn}+127)/128, v0
        s_and_saveexec_b64 s[38:39], vcc
        s_cbranch_execz K_nopf
        global_load_dword v252, v[250:251], off
        """)
        A.label("K_nopf")
        A("s_mov_b64 exec, s[38:39]")
    A(f"""
    s_memrealtime s[48:49]
    s_waitcnt lgkmcnt(0)
    s_or_b32 s48, s48, 8
    s_and_b32 s48, s48, 0xfffffff8
    s_cmp_lg_u32 s16, 0
    s_cbranch_scc1 K_nononce
    v_mov_b32 v246, s48
    v_mov_b32 v247, 0
    v_mov_b32 v248, 0
    v_cmp_eq_u32 vcc, 0, v2
    s_and_saveexec_b64 s[38:39], vcc
    global_atomic_cmpswap v246, v248, v[246:247], s[32:33] sc0
    s_mov_b64 exec, s[38:39]
    """)
    A.label("K_nononce")
    A(f"""
    s_mov_b32 s20, s34
    s_mov_b32 s21, s35
    s_mov_b32 s22, {WS_SIZE}
    s_mov_b32 s23, 0x20000
    s_lshl_b32 s28, s17, 3
    s_add_u32 s28, s28, s19
    s_lshl_b32 s28, s28, 7             ; group*128
    s_add_u32 s51, s28, {WS_XCC}
    s_add_u32 s52, s28, {WS_FLAG1}
    """)
    A("""
    s_and_b32 s30, s16, 1          ; qb
    s_lshr_b32 s47, s16, 1
    v_and_b32 v3, 31, v2           ; q
    v_lshrrev_b32 v4, 5, v2        ; h
    v_lshrrev_b32 v5, 4, v2        ; g
    v_and_b32 v6, 15, v2           ; i
    v_lshrrev_b32 v7, 2, v6        ; r4
    v_and_b32 v8, 3, v2            ; c
    s_lshl_b32 s28, s30, 5
    v_add_u32 v9, s28, v3          ; row
    v_lshrrev_b32 v10, 1, v9
    v_and_b32 v10, 7, v10
    v_xor_b32 v10, v4, v10
    v_lshlrev_b32 v10, 4, v10
    v_lshl_add_u32 v10, v9, 7, v10
    v_lshrrev_b32 v13, 1, v5
    v_lshl_add_u32 v13, v13, 3, v7
    v_lshlrev_b32 v13, 8, v13
    v_and_b32 v14, 1, v5
    v_lshl_add_u32 v13, v14, 5, v13
    v_and_b32 v14, 1, v8
    v_lshl_add_u32 v15, v14, 4, v13
    v_lshrrev_b32 v14, 1, v8
    v_lshl_add_u32 v15, v14, 3, v15
    s_lshl_b32 s28, s47, 1
    v_xor_b32 v14, s28, v7
    v_lshl_add_u32 v11, v14, 6, v15
    v_xor_b32 v14, 1, v14
    v_lshl_add_u32 v12, v14, 6, v15
    """)
    for ks_ in range(4):
        A(f"v_xor_b32 v{64+ks_}, {ks_<<5}, v10")
        A(f"v_add_u32 v{64+ks_}, {X_SLOT[0]}, v{64+ks_}")
    A(f"v_add_u32 v68, {WQ_SLOT[0]}, v11")
    A(f"v_add_u32 v69, {WQ_SLOT[0]}, v12")
    nb = [0]
    def bar():
        A("s_barrier")
        if nb[0] in (0, 9, 17, 25): stamp(A, f"B{nb[0]}", 0)
        if P["stamps"] and nb[0] == P["cyc0"]: A("s_memtime s[92:93]")
        if P["stamps"] and nb[0] == P["cyc1"]: A("s_memtime s[94:95]")
        nb[0] += 1
    for c in range(9):
        bar()
        sl = c % 3
        def rd(ks):
            L = [f"ds_read_b128 v[{48+4*ks}:{51+4*ks}], v{64+ks} offset:{sl*8192}"]
            for tt in range(2):
                for sec in range(2):
                    d = 16 + tt*16 + ks*4 + sec*2
                    L.append(f"ds_read_b64_tr_b16 v[{d}:{d+1}], v{68+tt} offset:{sl*16384 + (16*ks+4*sec)*256}")
            return L
        def mm(ks):
            L = []
            for tt in range(2):
                acc = 128 + 16*tt
                cin = "0" if (c == 0 and ks == 0) else f"v[{acc}:{acc+15}]"
                L.append(f"v_mfma_f32_32x32x16_bf16 v[{acc}:{acc+15}], v[{16+tt*16+ks*4}:{19+tt*16+ks*4}], v[{48+4*ks}:{51+4*ks}], {cin}")
            return L
        for x in rd(0) + rd(1) + rd(2): A(x)
        A("s_waitcnt lgkmcnt(10)")
        m = mm(0); r3 = rd(3)
        A(m[0]); [A(x) for x in r3[:3]]; A(m[1]); [A(x) for x in r3[3:]]
        A("s_waitcnt lgkmcnt(10)"); [A(x) for x in mm(1)]
        A("s_waitcnt lgkmcnt(5)"); [A(x) for x in mm(2)]
        A("s_waitcnt lgkmcnt(0)"); [A(x) for x in mm(3)]
    A(f"""
    s_lshl_b32 s28, s47, 5
    v_add_u32 v10, s28, v3
    v_and_b32 v11, 15, v10
    v_xor_b32 v11, v4, v11
    v_lshlrev_b32 v11, 4, v11
    v_lshl_add_u32 v10, v10, 8, v11
    v_lshlrev_b32 v9, 4, v2              ; lane*16
    s_lshl_b32 s28, s16, 12
    v_add_u32 v13, s28, v9
    v_add_u32 v13, {QX}, v13
    s_lshl_b32 s28, s30, 12
    v_add_u32 v12, s28, v9
    v_add_u32 v12, {QX}, v12
    s_waitcnt vmcnt(0)
    """)
    for s in range(8):
        A(f"v_xor_b32 v{80+s}, {s<<5}, v10")
    for s in range(8):
        A(f"v_add_u32 v{88+s}, 65536, v{80+s}")
    A(f"""
    s_cmp_lg_u32 s16, 0
    s_cbranch_scc1 K_nononce2
    v_cmp_eq_u32 vcc, 0, v246
    v_mov_b32 v247, s48
    s_nop 0
    v_cndmask_b32 v246, v246, v247, vcc
    v_mov_b32 v247, {NX}
    v_cmp_eq_u32 vcc, 0, v2
    s_and_saveexec_b64 s[38:39], vcc
    ds_write_b32 v247, v246
    s_getreg_b32 s28, hwreg(HW_REG_XCC_ID, 0, 4)
    s_and_b32 s28, s28, 7
    v_or_b32 v246, s28, v246
    s_lshl_b32 s28, s31, 2
    v_mov_b32 v247, s28
    buffer_store_dword v246, v247, s[20:23], s51 offen sc1
    s_mov_b64 exec, s[38:39]
    """)
    A.label("K_nononce2")
    for i in range(16):
        A(f"v_cvt_pk_bf16_f32 v{16+i}, v{128+2*i}, v{129+2*i}")
    for f in range(4):
        A(f"ds_write_b128 v13, v[{16+4*f}:{19+4*f}] offset:{f*1024}")
    A("s_waitcnt lgkmcnt(0)")
    def kreads(c):
        buf = 16 + 32*(c & 1)
        return [f"ds_read_b128 v[{buf+4*s}:{buf+4*s+3}], v{(80 if c < 4 else 88)+s} offset:{(c&3)*16384}" for s in range(8)]
    def kmm(c):
        buf = 16 + 32*(c & 1); acc = 128 + 16*c
        return [f"v_mfma_f32_32x32x16_bf16 v[{acc}:{acc+15}], v[{buf+4*s}:{buf+4*s+3}], v[{96+4*s}:{99+4*s}], " + ("0" if s == 0 else f"v[{acc}:{acc+15}]") for s in range(8)]
    def kmax(c):
        acc = 128 + 16*c
        return [(f"v_max_f32 v15, v{acc}, v{acc+1}" if (c == 0 and s == 0) else f"v_max3_f32 v15, v15, v{acc+2*s}, v{acc+2*s+1}") for s in range(8)]
    for c in range(9):
        if c < 8: bar()
        if c == 0:
            for s in range(8):
                A(f"ds_read_b128 v[{96+4*s}:{99+4*s}], v12 offset:{(s>>2)*8192+(s&3)*1024}")
            kr = kreads(0)
            for x in kr[:4]: A(x)
            A("s_waitcnt lgkmcnt(8)")
            for x in kr[4:]: A(x)
            A("s_waitcnt lgkmcnt(0)")
        else:
            fill = kreads(c) if c < 8 else []
            if c >= 2: fill = fill + kmax(c-2)
            interleave(A, kmm(c-1), fill, lead=2 if c < 8 else 0, per=2)
            if c < 8: A("s_waitcnt lgkmcnt(0)")
    A(f"""
    v_lshrrev_b32 v66, 1, v5
    v_lshl_add_u32 v66, v66, 2, v7
    s_lshl_b32 s28, s47, 5
    v_add_u32 v66, s28, v66
    v_lshlrev_b32 v66, 8, v66
    v_and_b32 v67, 1, v5
    v_lshl_add_u32 v66, v67, 5, v66
    v_lshl_add_u32 v66, v8, 3, v66
    s_lshl_b32 s28, s47, 1
    v_xor_b32 v67, s28, v7
    """)
    for u in range(4):
        A(f"v_xor_b32 v68, {u}, v67")
        A(f"v_lshl_add_u32 v{3+u}, v68, 6, v66")
    A(f"""
    v_lshlrev_b32 v9, 2, v2
    s_lshl_b32 s28, s16, 8
    v_add_u32 v13, s28, v9
    v_add_u32 v13, {MX}, v13
    s_xor_b32 s28, s16, 2
    s_lshl_b32 s28, s28, 8
    v_add_u32 v14, s28, v9
    v_add_u32 v14, {MX}, v14
    v_mov_b32 v8, 0x3f803f80
    v_mov_b32 v9, 0x3f803f80
    v_mov_b32 v10, 0x3f803f80
    v_mov_b32 v11, 0x3f803f80
    s_mov_b32 s40, {f32bits(SCALE):#x}
    """)
    for x in kmax(7): A(x)
    A(f"""
    v_mov_b32 v12, v15
    s_nop 1
    v_permlane32_swap_b32 v15, v12
    s_nop 1
    v_max_f32 v7, v15, v12
    ds_write_b32 v13, v7
    s_waitcnt lgkmcnt(0)
    """)
    def exps(c, ks):
        sacc = 128 + 16*c + 8*ks
        L = []
        for j in range(8): L.append(f"v_fma_f32 v{sacc+j}, v{sacc+j}, s40, v7")
        for j in range(8): L.append(f"v_exp_f32 v{sacc+j}, v{sacc+j}")
        for j in range(4): L.append(f"v_cvt_pk_bf16_f32 v{sacc+j}, v{sacc+2*j}, v{sacc+2*j+1}")
        return L
    def vreads(c, ks):
        L = []
        for u in range(4):
            a = (3 if c < 4 else 12) + u
            for sec in range(2):
                d = 96 + ks*16 + u*4 + sec*2
                L.append(f"ds_read_b64_tr_b16 v[{d}:{d+1}], v{a} offset:{(c&3)*16384 + (16*ks+8*sec)*256}")
        return L
    def vmm(c, ks):
        pb = 128 + 16*c + 8*ks
        L = []
        for u in range(4):
            acc = 16 + 16*u
            cin = "0" if (c == 0 and ks == 0) else f"v[{acc}:{acc+15}]"
            L.append(f"v_mfma_f32_32x32x16_bf16 v[{acc}:{acc+15}], v[{96+ks*16+u*4}:{99+ks*16+u*4}], v[{pb}:{pb+3}], {cin}")
        cin = "0" if (c == 0 and ks == 0) else "v[80:95]"
        L.append(f"v_mfma_f32_32x32x16_bf16 v[80:95], v[8:11], v[{pb}:{pb+3}], {cin}")
        return L
    lead = P["explead"]
    expq = [(c, ks) for c in range(8) for ks in range(2)]
    ei = 0
    for c in range(8):
        bar()
        if c == 0:
            A(f"""
            v_mov_b32 v13, {NX}
            ds_read_b32 v12, v14
            ds_read_b32 v13, v13
            s_waitcnt lgkmcnt(0)
            v_readfirstlane_b32 s50, v13
            v_max_f32 v7, v7, v12
            v_mul_f32 v7, s40, v7
            v_sub_f32 v7, 0, v7
            """)
            for u in range(4): A(f"v_add_u32 v{12+u}, 65536, v{3+u}")
            A("v_lshlrev_b32 v0, 2, v2")
            A("v_and_b32 v0, 12, v0")
            A("buffer_load_dword v1, v0, s[20:23], s51 offen sc1")
            for x in vreads(0, 0): A(x)
            while ei < lead:
                for x in exps(*expq[ei]): A(x)
                ei += 1
            A("s_waitcnt lgkmcnt(4)")
            for x in vreads(0, 1): A(x)
            A("s_waitcnt lgkmcnt(8)")
            fill = []
            if ei < 16: fill = exps(*expq[ei]); ei += 1
            interleave(A, vmm(0, 0), fill)
            A("s_waitcnt lgkmcnt(0)")
        else:
            fill = vreads(c, 0)
            if ei < 16: fill = fill + exps(*expq[ei]); ei += 1
            interleave(A, vmm(c-1, 1), fill, lead=4)
            fill = vreads(c, 1)
            if ei < 16: fill = fill + exps(*expq[ei]); ei += 1
            for x in fill[:4]: A(x)
            A("s_waitcnt lgkmcnt(4)")
            interleave(A, vmm(c, 0), fill[4:])
            A("s_waitcnt lgkmcnt(0)")
    for x in vmm(7, 1): A(x)
    assert ei == 16
    A(f"""
    v_lshlrev_b32 v3, 4, v2
    s_lshl_b32 s28, s16, 13
    v_add_u32 v4, s28, v3
    v_add_u32 v4, {OX}, v4
    s_xor_b32 s29, s16, 2
    s_lshl_b32 s28, s29, 13
    v_add_u32 v5, s28, v3
    v_add_u32 v5, {OX}, v5
    v_lshlrev_b32 v6, 2, v2
    s_lshl_b32 s28, s16, 8
    v_add_u32 v7, s28, v6
    v_add_u32 v7, {LX}, v7
    s_lshl_b32 s28, s29, 8
    v_add_u32 v6, s28, v6
    v_add_u32 v6, {LX}, v6
    """)
    A.nop(4)
    for i in range(8):
        if i == 4: A.nop(4)
        A(f"ds_write_b128 v4, v[{48+4*i}:{51+4*i}] offset:{i*1024}")
    A("ds_write_b32 v7, v80")
    A(f"""
    v_bfe_u32 v9, v2, 4, 1
    v_lshlrev_b32 v9, 10, v9
    v_lshrrev_b32 v10, 5, v2
    v_lshl_add_u32 v9, v10, 8, v9
    v_and_b32 v10, 15, v2
    v_lshl_add_u32 v9, v10, 4, v9
    s_lshl_b32 s28, s30, 11
    s_lshl_b32 s29, s47, 13
    s_add_u32 s28, s28, s29
    v_add_u32 v13, s28, v9
    v_add_u32 v13, {OWN}, v13          ; own-O LDS write address
    s_lshl_b32 s29, s17, 5
    s_add_u32 s29, s29, s18
    s_lshl_b32 s29, s29, 14
    s_add_u32 s42, s28, s29
    s_add_u32 s43, s42, 4096
    s_mov_b32 s45, 0
    """)
    A.label("K_xcc_chk")
    A(f"""
    s_waitcnt vmcnt(0)
    v_and_b32 v10, 0xfffffff8, v1
    v_cmp_ne_u32 vcc, s50, v10
    s_cmp_eq_u64 vcc, 0
    s_cbranch_scc1 K_xcc_ok
    s_add_u32 s45, s45, 1
    s_cmp_gt_u32 s45, 0x40000
    s_cbranch_scc1 K_xcc_ok
    s_sleep 1
    buffer_load_dword v1, v0, s[20:23], s51 offen sc1
    s_branch K_xcc_chk
    """)
    A.label("K_xcc_ok")
    A(f"""
    v_readfirstlane_b32 s28, v1
    s_nop 1
    v_cmp_ne_u32 vcc, s28, v1
    s_cmp_eq_u64 vcc, 0
    s_cselect_b32 s53, {1 if P['fast'] else 0}, 0
    s_waitcnt lgkmcnt(0)
    """)
    bar()
    for i in range(8):
        A(f"ds_read_b128 v[{96+4*i}:{99+4*i}], v5 offset:{i*1024}")
    A("ds_read_b32 v8, v6")
    A("s_waitcnt lgkmcnt(0)")
    bar()
    A("v_add_f32 v8, v8, v80")
    A("v_rcp_f32 v8, v8")
    for i in range(16):
        A(f"v_pk_add_f32 v[{16+2*i}:{17+2*i}], v[{16+2*i}:{17+2*i}], v[{96+2*i}:{97+2*i}]")
    for u in range(2):
        for a1 in range(2):
            for r in range(4):
                x = 16 + u*16 + a1*8 + 2*r
                A(f"v_pk_mul_f32 v[{x}:{x+1}], v[{x}:{x+1}], v[8:9] op_sel_hi:[1,0]")
            d = 48 + u*8 + a1*4
            for r in range(4):
                x = 16 + u*16 + a1*8 + 2*r
                A(f"v_cvt_pk_bf16_f32 v{d+r}, v{x}, v{x+1}")
    A("s_cmp_eq_u32 s53, 1")
    A("s_cbranch_scc1 K_ost_fast")
    for u in range(2):
        for a1 in range(2):
            d = 48 + u*8 + a1*4
            A(f"buffer_store_dwordx4 v[{d}:{d+3}], v9, s[20:23], s{42+u} offen offset:{a1*512} sc1")
    A("s_branch K_ost_done")
    A.label("K_ost_fast")
    for u in range(2):
        for a1 in range(2):
            d = 48 + u*8 + a1*4
            A(f"buffer_store_dwordx4 v[{d}:{d+3}], v9, s[20:23], s{42+u} offen offset:{a1*512}")
    A.label("K_ost_done")
    for u in range(2):
        for a1 in range(2):
            d = 48 + u*8 + a1*4
            A(f"ds_write_b128 v13, v[{d}:{d+3}] offset:{u*4096 + a1*512}")
    A(f"""
    s_lshl_b32 s28, s31, 2
    s_add_u32 s28, s28, s16
    s_lshl_b32 s28, s28, 2
    v_mov_b32 v10, s28
    v_mov_b32 v11, s50
    v_lshlrev_b32 v12, 2, v2
    v_lshrrev_b32 v13, 5, v2
    v_lshlrev_b32 v13, 4, v13
    v_bfe_u32 v14, v2, 4, 1
    v_lshlrev_b32 v14, 2, v14
    v_bfe_u32 v15, v2, 2, 2
    v_add_u32 v14, v14, v15
    v_add_u32 v13, v13, v14
    v_and_b32 v15, 3, v2
    v_lshlrev_b32 v15, 3, v15
    v_lshl_add_u32 v124, v13, 5, v15
    v_add_u32 v124, {REM}, v124
    v_lshl_add_u32 v13, v13, 8, v15
    s_lshl_b32 s28, s47, 2
    v_xor_b32 v14, s28, v14
    v_lshlrev_b32 v3, 4, v2
    s_lshl_b32 s28, s47, 10
    v_add_u32 v4, 1024, v3
    v_subrev_u32 v4, s28, v4
    v_add_u32 v3, s28, v3
    s_lshl_b32 s28, s30, 11
    v_add_u32 v5, s28, v3
    v_add_u32 v5, {OWN}, v5
    v_add_u32 v6, s28, v4
    v_add_u32 v6, {OWN}, v6            ; (qq=1)
    s_lshl_b32 s42, s17, 5
    s_lshl_b32 s28, s19, 2
    s_add_u32 s42, s42, s28
    s_lshl_b32 s42, s42, 14
    s_lshl_b32 s28, s30, 11
    s_add_u32 s42, s42, s28
    s_waitcnt lgkmcnt(0)
    v_lshl_add_u32 v56, v14, 5, v13
    v_xor_b32 v15, 1, v14
    v_lshl_add_u32 v57, v15, 5, v13
    v_xor_b32 v15, 2, v14
    v_lshl_add_u32 v58, v15, 5, v13
    v_xor_b32 v15, 3, v14
    v_lshl_add_u32 v59, v15, 5, v13
    v_add_u32 v60, 65536, v56
    v_add_u32 v61, 65536, v57
    v_add_u32 v62, 65536, v58
    v_add_u32 v63, 65536, v59
    """)
    stamp(A, "O issued", 0)
    bar()
    WB = [16, 36, 104]
    def wreads(T):
        buf = WB[T % 3]
        L = []
        for u in range(4):
            for sec in range(2):
                off = (32*T + 8*sec)*256
                base = 56 + u + (4 if off >= 65536 else 0)
                d = buf + u*4 + sec*2
                L.append(f"ds_read_b64_tr_b16 v[{d}:{d+1}], v{base} offset:{off % 65536}")
        for sec in range(2):
            d = buf + 16 + sec*2
            L.append(f"ds_read_b64_tr_b16 v[{d}:{d+1}], v124 offset:{(32*T + 8*sec)*32}")
        return L
    def wmm(T):
        buf = WB[T % 3]
        L = []
        for u in range(5):
            for qq in range(2 if u < 4 else 1):
                acc = 64 + (u*2+qq)*4
                cin = "0" if T == 0 else f"v[{acc}:{acc+3}]"
                b = 128 + (T*2+qq)*4
                L.append(f"v_mfma_f32_16x16x32_bf16 v[{acc}:{acc+3}], v[{buf+u*4}:{buf+u*4+3}], v[{b}:{b+3}], {cin}")
        return L
    def kstep(T, vm=None):
        w = f"s_waitcnt lgkmcnt({10 if T < 15 else 0})"
        if vm is not None: w = f"s_waitcnt vmcnt({vm}) lgkmcnt({10 if T < 15 else 0})"
        A(w)
        fill = wreads(T+2) if T < 14 else []
        mm_ = wmm(T)
        if fill:
            for i in range(5):
                A(mm_[i]); A(fill[i])
            for i in range(5, 9):
                A(mm_[i])
                if i == 5: A("s_waitcnt lgkmcnt(10)")
                A(fill[i])
            A(fill[9])
        else:
            for m in mm_: A(m)
    for T in range(4):
        for qq in range(2):
            d = 128 + (T*2+qq)*4
            A(f"ds_read_b128 v[{d}:{d+3}], v{5+qq} offset:{T*4096}")
    w0 = wreads(0)
    for x in w0[:6]: A(x)
    A("s_waitcnt lgkmcnt(6)")
    for x in w0[6:]: A(x)
    w1 = wreads(1)
    for x in w1[:5]: A(x)
    A("s_waitcnt lgkmcnt(5)")
    for x in w1[5:]: A(x)
    kstep(0)
    A("s_waitcnt vmcnt(0)")
    A("v_cmp_eq_u32 vcc, 0, v2")
    A("s_and_saveexec_b64 s[38:39], vcc")
    A("s_cmp_eq_u32 s53, 1")
    A("s_cbranch_scc1 K_fl_fast")
    A("buffer_store_dword v11, v10, s[20:23], s52 offen sc1")
    A("s_branch K_fl_done")
    A.label("K_fl_fast")
    A("buffer_store_dword v11, v10, s[20:23], s52 offen")
    A.label("K_fl_done")
    A("s_mov_b64 exec, s[38:39]")
    stamp(A, "flag sent", 0)
    kstep(1); kstep(2); kstep(3)
    def poll(nlanes, soff, tag):
        lab = f"K_poll{tag}"; done = f"K_polldone{tag}"
        A(f"""
        s_mov_b32 s45, 0
        v_cmp_gt_u32 vcc, {nlanes}, v2
        s_and_b64 s[38:39], vcc, exec
        """)
        A.label(lab)
        A(f"""
        s_mov_b64 exec, s[38:39]
        buffer_load_dword v10, v12, s[20:23], {soff} offen sc1
        s_waitcnt vmcnt(0)
        v_cmp_ne_u32 vcc, s50, v10
        s_mov_b64 exec, -1
        s_cmp_eq_u64 vcc, 0
        s_cbranch_scc1 {done}
        s_add_u32 s45, s45, 1
        s_cmp_gt_u32 s45, 0x40000
        s_cbranch_scc1 {done}
        s_sleep {P['sleep']}
        s_branch {lab}
        """)
        A.label(done)
    poll(16, "s52", 1)
    stamp(A, "flags1", 0)
    for hh in range(1, 4):
        A(f"s_add_u32 s28, s31, {hh}")
        A("s_and_b32 s28, s28, 3")
        A("s_lshl_b32 s28, s28, 14")
        A("s_add_u32 s28, s28, s42")
        for t in range(4):
            T = hh*4 + t
            if t: A("s_add_u32 s28, s28, 4096")
            for qq in range(2):
                d = 128 + (T*2+qq)*4
                A(f"buffer_load_dwordx4 v[{d}:{d+3}], v{3+qq}, s[20:23], s28 offen sc1")
    for T in range(4, 16):
        if T == 8: bar()
        kstep(T, vm=2*(15-T))
    stamp(A, "oproj done", 0)
    A(f"""
    s_lshl_b32 s28, s19, 3
    s_add_u32 s28, s28, s17
    s_lshl_b32 s28, s28, 2
    s_add_u32 s28, s28, s31
    s_mul_i32 s28, s28, 36864
    s_add_u32 s28, s28, {WS_PART}
    s_lshl_b32 s29, s30, 11
    s_add_u32 s28, s28, s29
    s_and_b32 s29, s31, 1
    s_xor_b32 s46, s29, 1
    s_lshl_b32 s46, s46, 15
    s_add_u32 s46, s46, s28
    s_lshl_b32 s29, s29, 12
    s_add_u32 s28, s28, s29
    s_lshl_b32 s29, s47, 14
    s_add_u32 s28, s28, s29
    s_mov_b32 s54, 0xffffff00
    s_bfe_u32 s29, s50, 0x80000
    v_mov_b32 v104, s29
    s_bfe_u32 s29, s50, 0x80008
    v_mov_b32 v105, s29
    s_bfe_u32 s29, s50, 0x80010
    v_mov_b32 v106, s29
    s_lshr_b32 s29, s50, 24
    v_mov_b32 v107, s29
    """)
    for u in range(5):
        for qq in range(2 if u < 4 else 1):
            acc = 64 + (u*2+qq)*4
            for r in range(4):
                A(f"v_and_or_b32 v{acc+r}, v{acc+r}, s54, v{104+r}")
            if u < 4:
                if qq == 0: A(f"s_add_u32 s29, s28, {u*4096}")
                A(f"buffer_store_dwordx4 v[{acc}:{acc+3}], v{3+qq}, s[20:23], s29 offen sc1")
            else:
                A(f"buffer_store_dwordx4 v[{acc}:{acc+3}], v3, s[20:23], s46 offen sc1")
    stamp(A, "part issued", 0)
    A("s_branch K_final")
    A.label("K_w4_final")
    A(f"""
    s_mov_b32 s20, s34
    s_mov_b32 s21, s35
    s_mov_b32 s22, {WS_SIZE}
    s_mov_b32 s23, 0x20000
    """)
    A.label("K_final")
    A(f"""
    s_lshl_b32 s28, s16, 6
    v_add_u32 v4, s28, v2
    v_lshrrev_b32 v5, 5, v4
    v_bfe_u32 v6, v4, 3, 2
    v_and_b32 v7, 7, v4
    v_lshlrev_b32 v8, 12, v5
    v_lshl_add_u32 v8, v6, 8, v8
    v_lshl_add_u32 v8, v7, 4, v8
    s_lshr_b32 s28, s19, 1
    s_lshl_b32 s28, s28, 10
    s_and_b32 s29, s19, 1
    s_lshl_b32 s29, s29, 7
    s_add_u32 s28, s28, s29
    s_lshl_b32 s29, s17, 2
    s_add_u32 s29, s29, s31
    s_mul_i32 s29, s29, 36864
    s_add_u32 s28, s28, s29
    s_add_u32 s42, s28, {WS_PART}
    v_mul_u32_u24 v9, 1152, v7
    v_lshl_add_u32 v9, v5, 5, v9
    v_lshl_add_u32 v9, v6, 3, v9
    s_lshl_b32 s28, s17, 6
    s_lshl_b32 s29, s19, 3
    s_add_u32 s28, s28, s29
    s_mul_i32 s28, s28, 1152
    s_mul_i32 s29, s31, 288
    s_add_u32 s43, s28, s29
    s_mov_b32 s24, s14
    s_mov_b32 s25, s15
    s_mov_b32 s26, {8*64*576*2}
    s_mov_b32 s27, 0x20000
    s_mov_b32 s55, 0x0c0c0400
    s_mov_b32 s56, 0x04000c0c
    s_mov_b32 s45, 0
    v_cmp_gt_u32 vcc, 288, v4
    s_and_saveexec_b64 s[38:39], vcc
    s_cbranch_execz K_fin_done
    """)
    A.label("K_fin_poll")
    for j in range(8):
        A(f"s_add_u32 s28, s42, {j*32*36864}")
        A(f"buffer_load_dwordx4 v[{16+4*j}:{19+4*j}], v8, s[20:23], s28 offen sc1")
    A("s_mov_b64 s[40:41], 0")
    for j in range(8):
        x = 16 + 4*j
        A(f"s_waitcnt vmcnt({7-j})")
        A(f"v_perm_b32 v10, v{x+1}, v{x}, s55")
        A(f"v_perm_b32 v11, v{x+3}, v{x+2}, s56")
        A("v_or_b32 v10, v10, v11")
        A("v_cmp_ne_u32 vcc, s50, v10")
        A("s_or_b64 s[40:41], s[40:41], vcc")
    A(f"""
    s_cmp_eq_u64 s[40:41], 0
    s_cbranch_scc1 K_fin_ok
    s_add_u32 s45, s45, 1
    s_cmp_gt_u32 s45, 0x40000
    s_cbranch_scc1 K_fin_ok
    s_sleep {P['sleep']}
    s_branch K_fin_poll
    """)
    A.label("K_fin_ok")
    stamp(A, "final data", 0)
    A("s_mov_b32 s54, 0xffffff00")
    for r in range(32):
        A(f"v_and_b32 v{16+r}, s54, v{16+r}")
    for j in range(1, 8):
        A(f"v_pk_add_f32 v[16:17], v[16:17], v[{16+4*j}:{17+4*j}]")
        A(f"v_pk_add_f32 v[18:19], v[18:19], v[{18+4*j}:{19+4*j}]")
    A("""
    v_cvt_pk_bf16_f32 v10, v16, v17
    v_cvt_pk_bf16_f32 v11, v18, v19
    buffer_store_dwordx2 v[10:11], v9, s[24:27], s43 offen
    """)
    A.label("K_fin_done")
    A("s_mov_b64 exec, s[38:39]")
    if P["dbgspan"]:
        A("""
        s_waitcnt vmcnt(0)
        s_memrealtime s[58:59]
        s_waitcnt lgkmcnt(0)
        s_sub_u32 s58, s58, s50
        v_mov_b32 v10, s58
        v_mov_b32 v11, 4
        v_cmp_eq_u32 vcc, 0, v2
        s_and_saveexec_b64 s[38:39], vcc
        s_cbranch_execz K_ds_done
        global_atomic_umax v11, v10, s[32:33]
        """)
        A.label("K_ds_done")
        A("s_mov_b64 exec, s[38:39]")
    if P["stamps"]:
        A("s_cmp_eq_u32 s16, 4")
        A("s_cbranch_scc1 K_st4")
        A("v_mov_b32 v0, v2")
        A("s_cmp_eq_u32 s16, 0")
        A("s_cbranch_scc0 K_end")
        stamp_write(A, 0, 0)
        A("s_endpgm")
        A.label("K_st4")
        stamp_write(A, 1, 256)
    A.label("K_end")
    A("s_endpgm")
    A.label("K_codeend")

A = Asm()
hdr = f"""; generated by gen5.py  {' '.join(sys.argv[2:])}
; @launch grid=(256,1,1) block=(512,1,1) lds=163840
.amdgcn_target "amdgcn-amd-amdhsa--gfx950"
.text
"""
kernel(A)
out = hdr + A.text() + '.section .rodata,"a"\n' + kernel_desc(NAME + "_kernel")
open(sys.argv[1], "w").write(out)
```

```python
import sys, math, struct
from asmlib import *

NAME = "standalone__gqa_block_cached__near_ridge"
P = dict(kv_aux="", w_aux="", wo_aux="", stamps=False, prefetch=True, rot=True,
         ksched="0,0,3,5",
         sched="9:k4,k5;10:k6,v0;11:k7,v1;12:v2;13:v3;14:rem;17:v4;18:v5;19:v6,w0;20:v7,w1;21:w2;22:w3;23:w4;26:w5,w6,w7",
         fast=True,
         explead=2, sleep=1, cyc0=17, cyc1=25, dbgspan=False, h1st='sc1', h1ld='sc1')
for a in sys.argv[2:]:
    k, v = a.split("=")
    P[k] = type(P[k])(eval(v)) if not isinstance(P[k], str) else v

WS_O = 0
WS_PART = 0x400000
WS_FLAG1 = 0x1000000
WS_FLAG2 = 0x1010000
WS_STAMP = 0x2000000
WS_SIZE = 0x4000000

SLOT = 16384
KV_SLOT = [i * SLOT for i in range(8)]
WQ_SLOT = [5 * SLOT, 6 * SLOT, 7 * SLOT]
X_SLOT = [131072, 131072 + 8192, 131072 + 16384]
QX = 131072
MX = 131072 + 24576
NX = MX + 1024
OX = 5 * 16384
LX = 147456
OWN = 147456
REM = 131072
WS_XCC = 0x1020000
SCALE = math.log2(math.e) / math.sqrt(128.0)
def f32bits(x): return struct.unpack("<I", struct.pack("<f", x))[0]
NBAR = 29

STAMPS_BY_ROLE = {}
def stamp(A, name, role):
    if not P["stamps"]: return
    lst = STAMPS_BY_ROLE.setdefault(role, [])
    k = len(lst)
    assert k < 13, "too many stamps"
    lst.append(name)
    A(f"s_memrealtime s[{64+2*k}:{65+2*k}]")

def stamp_write(A, role, tid):
    if not P["stamps"]: return
    n = len(STAMPS_BY_ROLE.get(role, []))
    A("s_waitcnt vmcnt(0)")
    A("s_memrealtime s[62:63]")
    A("s_waitcnt lgkmcnt(0)")
    A(f"""
    s_lshl_b32 s28, s2, 6
    s_add_u32 s28, s28, {WS_STAMP + role*0x10000}
    v_mov_b32 v20, s28
    s_sub_u32 s94, s94, s92
    v_mov_b32 v24, s94
    v_mov_b32 v25, s60
    v_mov_b32 v26, s62
    """)
    for k in range(13):
        A(f"v_mov_b32 v{27+k}, s{64+2*k}" if k < n else f"v_mov_b32 v{27+k}, 0")
    lab = A.newlabel("sk")
    A(f"""
    v_cmp_eq_u32 vcc, {tid}, v0
    s_and_saveexec_b64 s[38:39], vcc
    s_cbranch_execz {lab}
    global_store_dwordx4 v20, v[24:27], s[34:35]
    global_store_dwordx4 v20, v[28:31], s[34:35] offset:16
    global_store_dwordx4 v20, v[32:35], s[34:35] offset:32
    global_store_dwordx4 v20, v[36:39], s[34:35] offset:48
    """)
    A.label(lab)
    A("s_mov_b64 exec, s[38:39]")

def interleave(A, mf, fill, lead=0, per=None):
    n = len(mf); k = 0
    for _ in range(lead):
        if k < len(fill): A(fill[k]); k += 1
    rem = len(fill) - k
    for i, m in enumerate(mf):
        A(m)
        tgt = lead + ((rem * (i + 1) + n - 1) // n if per is None else per * (i + 1))
        while k < min(tgt, len(fill)):
            A(fill[k]); k += 1
    while k < len(fill):
        A(fill[k]); k += 1

def loaders(A):
    A("s_sub_u32 s30, s16, 4")
    A("""
    v_lshrrev_b32 v7, 4, v2            ; l>>4
    v_and_b32 v16, 15, v2
    s_cmp_eq_u32 s30, 3
    s_cbranch_scc1 K_kload
    s_cmp_eq_u32 s30, 0
    s_cbranch_scc1 K_xsetup
    """)
    A(f"""
    v_lshlrev_b32 v17, 2, v7
    v_xor_b32 v16, v16, v17
    v_lshlrev_b32 v16, 4, v16
    v_lshl_add_u32 v20, v7, 13, v16
    """)
    for jj in range(1, 8):
        A(f"v_add_u32 v{20+jj}, {32768*jj - 1024*(jj&3)}, v20")
    A(f"""
    s_sub_u32 s29, s30, 1
    s_lshl_b32 s40, s18, 8
    s_lshl_b32 s28, s29, 18
    s_add_u32 s40, s40, s28            ; soffset
    s_lshl_b32 s42, s29, 13
    s_add_u32 s42, s42, {WQ_SLOT[0]}
    s_mov_b32 s41, {64*8192}
    s_mov_b32 s43, 16384
    s_waitcnt lgkmcnt(0)
    s_mov_b32 s20, s10
    s_mov_b32 s21, s11
    s_mov_b32 s22, {576*4096*2}
    s_branch K_asetup
    """)
    A.label("K_xsetup")
    A(f"""
    v_lshrrev_b32 v5, 3, v2
    v_mul_u32_u24 v5, 1152, v5
    v_and_b32 v6, 7, v2
    v_xor_b32 v6, v6, v7
    v_lshl_add_u32 v20, v6, 4, v5       ; par 0
    v_xor_b32 v6, 4, v6
    v_lshl_add_u32 v21, v6, 4, v5       ; par 1
    """)
    for j in range(7, 0, -1):
        A(f"v_add_u32 v{20+j}, {9216*j - 1024*(j&3)}, v{20+(j&1)}")
    A(f"""
    s_mul_i32 s40, s17, 73728
    s_mov_b32 s42, {X_SLOT[0]}
    s_mov_b32 s41, 128
    s_mov_b32 s43, 8192
    s_waitcnt lgkmcnt(0)
    s_mov_b32 s20, s4
    s_mov_b32 s21, s5
    s_mov_b32 s22, {8*64*576*2}
    """)
    A.label("K_asetup")
    A("s_mov_b32 s23, 0x20000")
    A("s_mov_b32 s44, 0")
    if P["rot"]:
        A("""
        s_mul_i32 s44, s31, 3
        s_add_u32 s44, s44, s17
        s_cmp_ge_u32 s44, 9
        s_cselect_b32 s28, 9, 0
        s_sub_u32 s44, s44, s28
        s_mul_i32 s28, s44, s41
        s_add_u32 s40, s40, s28
        """)
    A("""
    s_mul_i32 s47, s41, 9              ; soffset wrap
    s_mul_i32 s48, s43, 3              ; lds wrap
    s_mov_b32 s45, 0
    s_mov_b32 s46, 0
    """)
    stamp(A, "ready", 1)
    A.label("A_loop")
    A("""
    s_cmp_lt_u32 s45, 2
    s_cbranch_scc1 A_issue
    s_waitcnt vmcnt(8)
    s_barrier
    """)
    A.label("A_issue")
    A("s_mov_b32 m0, s42")
    A("s_add_u32 s28, s42, 4096")
    for j in range(4):
        A(f"buffer_load_dwordx4 v{20+j}, s[20:23], s40 offen offset:{j*1024} {P['w_aux']} lds")
    A("s_mov_b32 m0, s28")
    A("s_add_u32 s44, s44, 1")
    for j in range(4, 8):
        A(f"buffer_load_dwordx4 v{20+j}, s[20:23], s40 offen offset:{(j&3)*1024} {P['w_aux']} lds")
    A("""
    s_add_u32 s40, s40, s41
    s_cmp_lt_u32 s44, 9
    s_cbranch_scc1 A_nowrap
    s_mov_b32 s44, 0
    s_sub_u32 s40, s40, s47
    """)
    A.label("A_nowrap")
    A("""
    s_add_u32 s42, s42, s43
    s_add_u32 s46, s46, 1
    s_cmp_lt_u32 s46, 3
    s_cbranch_scc1 A_nowrap2
    s_mov_b32 s46, 0
    s_sub_u32 s42, s42, s48
    """)
    A.label("A_nowrap2")
    A("""
    s_add_u32 s45, s45, 1
    s_cmp_lt_u32 s45, 9
    s_cbranch_scc1 A_loop
    """)
    kv_setup(A)
    A("""
    s_waitcnt vmcnt(8)
    s_barrier
    s_waitcnt vmcnt(0)
    s_barrier
    """)
    stamp(A, "A done", 1)
    A("s_branch K_common")

    A.label("K_kload")
    kv_setup(A)
    stamp(A, "ready", 2)
    ks = [int(x) for x in P["ksched"].split(",")]
    def issueK_full(n):
        A(f"s_add_u32 s28, s44, {n*16384}")
        A(f"s_and_b32 s28, s28, 0x1ffff")
        A(f"s_add_u32 s28, s28, s40")
        for grp in range(4):
            A(f"s_mov_b32 m0, {KV_SLOT[n] + grp*4096}")
            if grp: A(f"s_add_u32 s28, s28, 4096")
            else: A("s_nop 0")
            for j in range(4):
                A(f"buffer_load_dwordx4 v{10+j}, s[20:23], s28 offen offset:{j*1024} {P['kv_aux']} lds")
    issued = 0
    while issued < 4 and ks[issued] == 0:
        issueK_full(issued); issued += 1
    for bi in range(9):
        A("s_barrier")
        while issued < 4 and ks[issued] - 1 <= bi:
            issueK_full(issued); issued += 1
    assert issued == 4
    A.label("K_common")
    log = []
    for n in range(4): log.append((("kv", n), 16))
    def after(tag):
        idx = max(i for i, (t, c) in enumerate(log) if t == tag)
        return sum(c for t, c in log[idx+1:])
    A("s_lshl_b32 s43, s30, 12")
    A("s_add_u32 s41, s40, s43")
    def issueKV(n):
        isV = n >= 8; c = n & 7
        srd = "s[24:27]" if isV else "s[20:23]"
        A(f"s_add_u32 s28, s44, {c*16384}")
        A(f"s_and_b32 s28, s28, 0x1ffff")
        A(f"s_add_u32 m0, s43, {KV_SLOT[c]}")
        A(f"s_add_u32 s28, s28, s41")
        for j in range(4):
            vo = 8 if isV else 10 + j
            A(f"buffer_load_dwordx4 v{vo}, {srd}, s28 offen offset:{j*1024} {P['kv_aux']} lds")
        log.append((("kv", n), 4))
    def wo_setup():
        A(f"""
        s_mov_b32 s20, s12
        s_mov_b32 s21, s13
        s_mov_b32 s22, {4096*576*2}
        v_lshrrev_b32 v7, 4, v2
        v_and_b32 v6, 15, v2
        v_mul_u32_u24 v5, 1152, v7
        v_lshlrev_b32 v16, 1, v7
        v_xor_b32 v16, v6, v16             ; (l&15) ^ ((l>>4)<<1)
        v_lshl_add_u32 v20, v16, 4, v5     ; par 0
        v_xor_b32 v16, 8, v16              ; ^ (4<<1)
        v_lshl_add_u32 v21, v16, 4, v5     ; par 1
        v_add_u32 v22, {2*3584}, v20
        v_add_u32 v23, {3*3584}, v21
        v_add_u32 v21, {1*3584}, v21
        v_lshrrev_b32 v5, 1, v2
        v_mul_u32_u24 v5, 1152, v5
        v_and_b32 v6, 1, v2
        v_lshl_add_u32 v24, v6, 4, v5
        v_add_u32 v25, {1*(32*1152-1024)}, v24
        v_add_u32 v26, {2*(32*1152-1024)}, v24
        v_add_u32 v27, {3*(32*1152-1024)}, v24
        s_mul_i32 s45, s19, {512*1152}
        s_mul_i32 s28, s31, 288
        s_add_u32 s45, s45, s28            ; row0*1152 + 288*i
        s_and_b32 s29, s31, 1
        s_lshl_b32 s28, s29, 5
        s_add_u32 s46, s45, s28
        s_mul_i32 s28, s30, {16*1152}
        s_add_u32 s46, s46, s28            ; + 16 w' rows
        s_lshl_b32 s49, s31, 7
        s_xor_b32 s29, s29, 1
        s_lshl_b32 s28, s29, 8
        s_add_u32 s45, s45, s28            ; rem start
        s_add_u32 s28, s30, s31
        s_and_b32 s28, s28, 3
        s_mul_i32 s28, s28, {128*1152}
        s_add_u32 s45, s45, s28            ; + 128*((w'+i)&3) rows
        """)
    def issueWO(t):
        A(f"s_add_u32 s28, s49, {t*64}")
        A(f"s_and_b32 s28, s28, 511")
        A(f"s_mul_i32 s28, s28, 1152")
        A(f"s_add_u32 m0, s43, {KV_SLOT[t]}")
        A(f"s_add_u32 s28, s28, s46")
        for j in range(4):
            A(f"buffer_load_dwordx4 v{20+j}, s[20:23], s28 offen offset:{j*1024} {P['wo_aux']} lds")
        log.append((("wo", t), 4))
    def issueREM():
        A(f"s_add_u32 m0, s43, {REM}")
        A("s_nop 0")
        for j in range(4):
            A(f"buffer_load_dwordx4 v{24+j}, s[20:23], s45 offen offset:{j*1024} {P['wo_aux']} lds")
        log.append((("rem", 0), 4))
    sched = {}
    for part in P["sched"].split(";"):
        k, v = part.split(":"); sched[int(k)] = v.split(",")
    def earliest(it):
        if it == "rem": return 10
        n = int(it[1:])
        if it[0] == "k": return 8 if n == 4 else 9
        if it[0] == "v": return 10 + n
        if it[0] == "w": return 18 + n if n <= 4 else 26
    for k, v in sched.items():
        for it in v: assert k >= earliest(it), (k, it)
    setup_done = False
    for bi in range(9, NBAR):
        need = None
        if 9 <= bi <= 16: need = ("kv", bi - 9)
        elif 17 <= bi <= 24: need = ("kv", bi - 17 + 8)
        if need is not None:
            A(f"s_waitcnt vmcnt({min(63, after(need))})")
            if need[1] in (0, 7, 8, 11, 12, 15): stamp(A, f"tile{need[1]}", 2)
        if bi == 27:
            A(f"s_waitcnt vmcnt({min(63, after(('wo', 4)))})")
        if bi == 28:
            A("s_waitcnt vmcnt(0)")
        A("s_barrier")
        if bi == 17:
            A(f"v_mov_b32 v19, {NX}")
            A("ds_read_b32 v19, v19")
            A("s_waitcnt lgkmcnt(0)")
            A("v_readfirstlane_b32 s50, v19")
        for it in sched.get(bi, []):
            if it[0] in "wr" and not setup_done:
                assert all(any(t == ("kv", n) for t, c in log) for n in range(8)), "K tiles must be issued before wo setup"
                wo_setup(); setup_done = True
            if it == "rem": issueREM()
            elif it[0] == "k": issueKV(int(it[1:]))
            elif it[0] == "v": issueKV(8 + int(it[1:]))
            elif it[0] == "w": issueWO(int(it[1:]))
    A("s_cmp_eq_u32 s16, 4")
    A("s_cbranch_scc1 K_w4_final")
    if P["stamps"]:
        A("s_cmp_eq_u32 s16, 7")
        A("s_cbranch_scc0 K_end")
        stamp_write(A, 2, 448)
    A("s_endpgm")

def kv_setup(A):
    A(f"""
    v_lshrrev_b32 v7, 4, v2
    v_and_b32 v6, 15, v2
    v_lshlrev_b32 v5, 8, v7
    v_xor_b32 v9, v6, v7
    v_lshl_add_u32 v10, v9, 4, v5
    v_xor_b32 v11, 0x40, v10
    v_xor_b32 v12, 0x80, v10
    v_xor_b32 v13, 0xc0, v10
    v_lshlrev_b32 v9, 2, v7
    v_xor_b32 v6, v6, v9
    v_lshl_add_u32 v8, v6, 4, v5
    s_lshr_b32 s28, s18, 1
    s_lshl_b32 s40, s17, 4
    s_add_u32 s40, s40, s28
    s_lshl_b32 s40, s40, 17
    s_and_b32 s44, s18, 1
    s_lshl_b32 s44, s44, 16
    s_waitcnt lgkmcnt(0)
    s_mov_b32 s20, s6
    s_mov_b32 s21, s7
    s_mov_b32 s22, 0x1000000
    s_mov_b32 s23, 0x20000
    s_mov_b32 s24, s8
    s_mov_b32 s25, s9
    s_mov_b32 s26, 0x1000000
    s_mov_b32 s27, 0x20000
    """)

def kernel(A):
    kn = NAME + "_kernel"
    A(f".globl {kn}\n.p2align 8\n.type {kn},@function\n{kn}:")
    if P["stamps"]: A("s_memrealtime s[60:61]")
    A("""
    s_load_dwordx4 s[4:7], s[0:1], 0
    s_load_dwordx4 s[8:11], s[0:1], 16
    s_load_dwordx4 s[12:15], s[0:1], 32
    s_load_dwordx4 s[32:35], s[0:1], 48
    v_lshrrev_b32 v1, 6, v0
    v_and_b32 v2, 63, v0
    s_cmp_ge_u32 s2, 256
    v_readfirstlane_b32 s16, v1
    s_cbranch_scc1 K_end
    s_and_b32 s19, s2, 7           ; j
    s_lshr_b32 s28, s2, 3
    s_and_b32 s31, s28, 3          ; i
    s_lshl_b32 s18, s19, 2
    s_add_u32 s18, s18, s31        ; hq
    s_lshr_b32 s17, s2, 5          ; b
    s_cmp_lt_u32 s16, 4
    s_cbranch_scc1 K_compute
    """)
    loaders(A)
    compute(A, kn)

def compute(A, kn):
    A.align(6)
    A.label("K_compute")
    if P["prefetch"]:
        A("s_getpc_b64 s[36:37]")
        A.label("K_pc")
        A(f"""
        s_sub_u32 s36, s36, (K_pc-{kn})
        s_subb_u32 s37, s37, 0
        v_lshlrev_b32 v250, 7, v0
        v_mov_b32 v251, s37
        v_add_co_u32 v250, vcc, s36, v250
        s_nop 1
        v_addc_co_u32 v251, vcc, 0, v251, vcc
        v_cmp_gt_u32 vcc, (K_codeend-{kn}+127)/128, v0
        s_and_saveexec_b64 s[38:39], vcc
        s_cbranch_execz K_nopf
        global_load_dword v252, v[250:251], off
        """)
        A.label("K_nopf")
        A("s_mov_b64 exec, s[38:39]")
    A(f"""
    s_memrealtime s[48:49]
    s_waitcnt lgkmcnt(0)
    s_or_b32 s48, s48, 8
    s_and_b32 s48, s48, 0xfffffff8
    s_cmp_lg_u32 s16, 0
    s_cbranch_scc1 K_nononce
    v_mov_b32 v246, s48
    v_mov_b32 v247, 0
    v_mov_b32 v248, 0
    v_cmp_eq_u32 vcc, 0, v2
    s_and_saveexec_b64 s[38:39], vcc
    global_atomic_cmpswap v246, v248, v[246:247], s[32:33] sc0
    s_mov_b64 exec, s[38:39]
    """)
    A.label("K_nononce")
    A(f"""
    s_mov_b32 s20, s34
    s_mov_b32 s21, s35
    s_mov_b32 s22, {WS_SIZE}
    s_mov_b32 s23, 0x20000
    s_lshl_b32 s28, s17, 3
    s_add_u32 s28, s28, s19
    s_lshl_b32 s28, s28, 7             ; group*128
    s_add_u32 s51, s28, {WS_XCC}
    s_add_u32 s52, s28, {WS_FLAG1}
    """)
    A("""
    s_and_b32 s30, s16, 1          ; qb
    s_lshr_b32 s47, s16, 1
    v_and_b32 v3, 31, v2           ; q
    v_lshrrev_b32 v4, 5, v2        ; h
    v_lshrrev_b32 v5, 4, v2        ; g
    v_and_b32 v6, 15, v2           ; i
    v_lshrrev_b32 v7, 2, v6        ; r4
    v_and_b32 v8, 3, v2            ; c
    s_lshl_b32 s28, s30, 5
    v_add_u32 v9, s28, v3          ; row
    v_lshrrev_b32 v10, 1, v9
    v_and_b32 v10, 7, v10
    v_xor_b32 v10, v4, v10
    v_lshlrev_b32 v10, 4, v10
    v_lshl_add_u32 v10, v9, 7, v10
    v_lshrrev_b32 v13, 1, v5
    v_lshl_add_u32 v13, v13, 3, v7
    v_lshlrev_b32 v13, 8, v13
    v_and_b32 v14, 1, v5
    v_lshl_add_u32 v13, v14, 5, v13
    v_and_b32 v14, 1, v8
    v_lshl_add_u32 v15, v14, 4, v13
    v_lshrrev_b32 v14, 1, v8
    v_lshl_add_u32 v15, v14, 3, v15
    s_lshl_b32 s28, s47, 1
    v_xor_b32 v14, s28, v7
    v_lshl_add_u32 v11, v14, 6, v15
    v_xor_b32 v14, 1, v14
    v_lshl_add_u32 v12, v14, 6, v15
    """)
    for ks_ in range(4):
        A(f"v_xor_b32 v{64+ks_}, {ks_<<5}, v10")
        A(f"v_add_u32 v{64+ks_}, {X_SLOT[0]}, v{64+ks_}")
    A(f"v_add_u32 v68, {WQ_SLOT[0]}, v11")
    A(f"v_add_u32 v69, {WQ_SLOT[0]}, v12")
    nb = [0]
    def bar():
        A("s_barrier")
        if nb[0] in (0, 9, 17, 25): stamp(A, f"B{nb[0]}", 0)
        if P["stamps"] and nb[0] == P["cyc0"]: A("s_memtime s[92:93]")
        if P["stamps"] and nb[0] == P["cyc1"]: A("s_memtime s[94:95]")
        nb[0] += 1
    for c in range(9):
        bar()
        sl = c % 3
        def rd(ks):
            L = [f"ds_read_b128 v[{48+4*ks}:{51+4*ks}], v{64+ks} offset:{sl*8192}"]
            for tt in range(2):
                for sec in range(2):
                    d = 16 + tt*16 + ks*4 + sec*2
                    L.append(f"ds_read_b64_tr_b16 v[{d}:{d+1}], v{68+tt} offset:{sl*16384 + (16*ks+4*sec)*256}")
            return L
        def mm(ks):
            L = []
            for tt in range(2):
                acc = 128 + 16*tt
                cin = "0" if (c == 0 and ks == 0) else f"v[{acc}:{acc+15}]"
                L.append(f"v_mfma_f32_32x32x16_bf16 v[{acc}:{acc+15}], v[{16+tt*16+ks*4}:{19+tt*16+ks*4}], v[{48+4*ks}:{51+4*ks}], {cin}")
            return L
        for x in rd(0) + rd(1) + rd(2): A(x)
        A("s_waitcnt lgkmcnt(10)")
        m = mm(0); r3 = rd(3)
        A(m[0]); [A(x) for x in r3[:3]]; A(m[1]); [A(x) for x in r3[3:]]
        A("s_waitcnt lgkmcnt(10)"); [A(x) for x in mm(1)]
        A("s_waitcnt lgkmcnt(5)"); [A(x) for x in mm(2)]
        A("s_waitcnt lgkmcnt(0)"); [A(x) for x in mm(3)]
    A(f"""
    s_lshl_b32 s28, s47, 5
    v_add_u32 v10, s28, v3
    v_and_b32 v11, 15, v10
    v_xor_b32 v11, v4, v11
    v_lshlrev_b32 v11, 4, v11
    v_lshl_add_u32 v10, v10, 8, v11
    v_lshlrev_b32 v9, 4, v2              ; lane*16
    s_lshl_b32 s28, s16, 12
    v_add_u32 v13, s28, v9
    v_add_u32 v13, {QX}, v13
    s_lshl_b32 s28, s30, 12
    v_add_u32 v12, s28, v9
    v_add_u32 v12, {QX}, v12
    s_waitcnt vmcnt(0)
    """)
    for s in range(8):
        A(f"v_xor_b32 v{80+s}, {s<<5}, v10")
    for s in range(8):
        A(f"v_add_u32 v{88+s}, 65536, v{80+s}")
    A(f"""
    s_cmp_lg_u32 s16, 0
    s_cbranch_scc1 K_nononce2
    v_cmp_eq_u32 vcc, 0, v246
    v_mov_b32 v247, s48
    s_nop 0
    v_cndmask_b32 v246, v246, v247, vcc
    v_mov_b32 v247, {NX}
    v_cmp_eq_u32 vcc, 0, v2
    s_and_saveexec_b64 s[38:39], vcc
    ds_write_b32 v247, v246
    s_getreg_b32 s28, hwreg(HW_REG_XCC_ID, 0, 4)
    s_and_b32 s28, s28, 7
    v_or_b32 v246, s28, v246
    s_lshl_b32 s28, s31, 2
    v_mov_b32 v247, s28
    buffer_store_dword v246, v247, s[20:23], s51 offen sc1
    s_mov_b64 exec, s[38:39]
    """)
    A.label("K_nononce2")
    for i in range(16):
        A(f"v_cvt_pk_bf16_f32 v{16+i}, v{128+2*i}, v{129+2*i}")
    for f in range(4):
        A(f"ds_write_b128 v13, v[{16+4*f}:{19+4*f}] offset:{f*1024}")
    A("s_waitcnt lgkmcnt(0)")
    def kreads(c):
        buf = 16 + 32*(c & 1)
        return [f"ds_read_b128 v[{buf+4*s}:{buf+4*s+3}], v{(80 if c < 4 else 88)+s} offset:{(c&3)*16384}" for s in range(8)]
    def kmm(c):
        buf = 16 + 32*(c & 1); acc = 128 + 16*c
        return [f"v_mfma_f32_32x32x16_bf16 v[{acc}:{acc+15}], v[{buf+4*s}:{buf+4*s+3}], v[{96+4*s}:{99+4*s}], " + ("0" if s == 0 else f"v[{acc}:{acc+15}]") for s in range(8)]
    def kmax(c):
        acc = 128 + 16*c
        return [(f"v_max_f32 v15, v{acc}, v{acc+1}" if (c == 0 and s == 0) else f"v_max3_f32 v15, v15, v{acc+2*s}, v{acc+2*s+1}") for s in range(8)]
    for c in range(9):
        if c < 8: bar()
        if c == 0:
            for s in range(8):
                A(f"ds_read_b128 v[{96+4*s}:{99+4*s}], v12 offset:{(s>>2)*8192+(s&3)*1024}")
            kr = kreads(0)
            for x in kr[:4]: A(x)
            A("s_waitcnt lgkmcnt(8)")
            for x in kr[4:]: A(x)
            A("s_waitcnt lgkmcnt(0)")
        else:
            fill = kreads(c) if c < 8 else []
            if c >= 2: fill = fill + kmax(c-2)
            interleave(A, kmm(c-1), fill, lead=2 if c < 8 else 0, per=2)
            if c < 8: A("s_waitcnt lgkmcnt(0)")
    A(f"""
    v_lshrrev_b32 v66, 1, v5
    v_lshl_add_u32 v66, v66, 2, v7
    s_lshl_b32 s28, s47, 5
    v_add_u32 v66, s28, v66
    v_lshlrev_b32 v66, 8, v66
    v_and_b32 v67, 1, v5
    v_lshl_add_u32 v66, v67, 5, v66
    v_lshl_add_u32 v66, v8, 3, v66
    s_lshl_b32 s28, s47, 1
    v_xor_b32 v67, s28, v7
    """)
    for u in range(4):
        A(f"v_xor_b32 v68, {u}, v67")
        A(f"v_lshl_add_u32 v{3+u}, v68, 6, v66")
    A(f"""
    v_lshlrev_b32 v9, 2, v2
    s_lshl_b32 s28, s16, 8
    v_add_u32 v13, s28, v9
    v_add_u32 v13, {MX}, v13
    s_xor_b32 s28, s16, 2
    s_lshl_b32 s28, s28, 8
    v_add_u32 v14, s28, v9
    v_add_u32 v14, {MX}, v14
    v_mov_b32 v8, 0x3f803f80
    v_mov_b32 v9, 0x3f803f80
    v_mov_b32 v10, 0x3f803f80
    v_mov_b32 v11, 0x3f803f80
    s_mov_b32 s40, {f32bits(SCALE):#x}
    """)
    for x in kmax(7): A(x)
    A(f"""
    v_mov_b32 v12, v15
    s_nop 1
    v_permlane32_swap_b32 v15, v12
    s_nop 1
    v_max_f32 v7, v15, v12
    ds_write_b32 v13, v7
    s_waitcnt lgkmcnt(0)
    """)
    def exps(c, ks):
        sacc = 128 + 16*c + 8*ks
        L = []
        for j in range(8): L.append(f"v_fma_f32 v{sacc+j}, v{sacc+j}, s40, v7")
        for j in range(8): L.append(f"v_exp_f32 v{sacc+j}, v{sacc+j}")
        for j in range(4): L.append(f"v_cvt_pk_bf16_f32 v{sacc+j}, v{sacc+2*j}, v{sacc+2*j+1}")
        return L
    def vreads(c, ks):
        L = []
        for u in range(4):
            a = (3 if c < 4 else 12) + u
            for sec in range(2):
                d = 96 + ks*16 + u*4 + sec*2
                L.append(f"ds_read_b64_tr_b16 v[{d}:{d+1}], v{a} offset:{(c&3)*16384 + (16*ks+8*sec)*256}")
        return L
    def vmm(c, ks):
        pb = 128 + 16*c + 8*ks
        L = []
        for u in range(4):
            acc = 16 + 16*u
            cin = "0" if (c == 0 and ks == 0) else f"v[{acc}:{acc+15}]"
            L.append(f"v_mfma_f32_32x32x16_bf16 v[{acc}:{acc+15}], v[{96+ks*16+u*4}:{99+ks*16+u*4}], v[{pb}:{pb+3}], {cin}")
        cin = "0" if (c == 0 and ks == 0) else "v[80:95]"
        L.append(f"v_mfma_f32_32x32x16_bf16 v[80:95], v[8:11], v[{pb}:{pb+3}], {cin}")
        return L
    lead = P["explead"]
    expq = [(c, ks) for c in range(8) for ks in range(2)]
    ei = 0
    for c in range(8):
        bar()
        if c == 0:
            A(f"""
            v_mov_b32 v13, {NX}
            ds_read_b32 v12, v14
            ds_read_b32 v13, v13
            s_waitcnt lgkmcnt(0)
            v_readfirstlane_b32 s50, v13
            v_max_f32 v7, v7, v12
            v_mul_f32 v7, s40, v7
            v_sub_f32 v7, 0, v7
            """)
            for u in range(4): A(f"v_add_u32 v{12+u}, 65536, v{3+u}")
            A("v_lshlrev_b32 v0, 2, v2")
            A("v_and_b32 v0, 12, v0")
            A("buffer_load_dword v1, v0, s[20:23], s51 offen sc1")
            for x in vreads(0, 0): A(x)
            while ei < lead:
                for x in exps(*expq[ei]): A(x)
                ei += 1
            A("s_waitcnt lgkmcnt(4)")
            for x in vreads(0, 1): A(x)
            A("s_waitcnt lgkmcnt(8)")
            fill = []
            if ei < 16: fill = exps(*expq[ei]); ei += 1
            interleave(A, vmm(0, 0), fill)
            A("s_waitcnt lgkmcnt(0)")
        else:
            fill = vreads(c, 0)
            if ei < 16: fill = fill + exps(*expq[ei]); ei += 1
            interleave(A, vmm(c-1, 1), fill, lead=4)
            fill = vreads(c, 1)
            if ei < 16: fill = fill + exps(*expq[ei]); ei += 1
            for x in fill[:4]: A(x)
            A("s_waitcnt lgkmcnt(4)")
            interleave(A, vmm(c, 0), fill[4:])
            A("s_waitcnt lgkmcnt(0)")
    for x in vmm(7, 1): A(x)
    assert ei == 16
    A(f"""
    v_lshlrev_b32 v3, 4, v2
    s_lshl_b32 s28, s16, 13
    v_add_u32 v4, s28, v3
    v_add_u32 v4, {OX}, v4
    s_xor_b32 s29, s16, 2
    s_lshl_b32 s28, s29, 13
    v_add_u32 v5, s28, v3
    v_add_u32 v5, {OX}, v5
    v_lshlrev_b32 v6, 2, v2
    s_lshl_b32 s28, s16, 8
    v_add_u32 v7, s28, v6
    v_add_u32 v7, {LX}, v7
    s_lshl_b32 s28, s29, 8
    v_add_u32 v6, s28, v6
    v_add_u32 v6, {LX}, v6
    """)
    A.nop(4)
    for i in range(8):
        if i == 4: A.nop(4)
        A(f"ds_write_b128 v4, v[{48+4*i}:{51+4*i}] offset:{i*1024}")
    A("ds_write_b32 v7, v80")
    A(f"""
    v_bfe_u32 v9, v2, 4, 1
    v_lshlrev_b32 v9, 10, v9
    v_lshrrev_b32 v10, 5, v2
    v_lshl_add_u32 v9, v10, 8, v9
    v_and_b32 v10, 15, v2
    v_lshl_add_u32 v9, v10, 4, v9
    s_lshl_b32 s28, s30, 11
    s_lshl_b32 s29, s47, 13
    s_add_u32 s28, s28, s29
    v_add_u32 v13, s28, v9
    v_add_u32 v13, {OWN}, v13          ; own-O LDS write address
    s_lshl_b32 s29, s17, 5
    s_add_u32 s29, s29, s18
    s_lshl_b32 s29, s29, 14
    s_add_u32 s42, s28, s29
    s_add_u32 s43, s42, 4096
    s_mov_b32 s45, 0
    """)
    A.label("K_xcc_chk")
    A(f"""
    s_waitcnt vmcnt(0)
    v_and_b32 v10, 0xfffffff8, v1
    v_cmp_ne_u32 vcc, s50, v10
    s_cmp_eq_u64 vcc, 0
    s_cbranch_scc1 K_xcc_ok
    s_add_u32 s45, s45, 1
    s_cmp_gt_u32 s45, 0x40000
    s_cbranch_scc1 K_xcc_ok
    s_sleep 1
    buffer_load_dword v1, v0, s[20:23], s51 offen sc1
    s_branch K_xcc_chk
    """)
    A.label("K_xcc_ok")
    A(f"""
    v_readfirstlane_b32 s28, v1
    s_nop 1
    v_cmp_ne_u32 vcc, s28, v1
    s_cmp_eq_u64 vcc, 0
    s_cselect_b32 s53, {1 if P['fast'] else 0}, 0
    s_waitcnt lgkmcnt(0)
    """)
    bar()
    for i in range(8):
        A(f"ds_read_b128 v[{96+4*i}:{99+4*i}], v5 offset:{i*1024}")
    A("ds_read_b32 v8, v6")
    A("s_waitcnt lgkmcnt(0)")
    bar()
    A("v_add_f32 v8, v8, v80")
    A("v_rcp_f32 v8, v8")
    for i in range(16):
        A(f"v_pk_add_f32 v[{16+2*i}:{17+2*i}], v[{16+2*i}:{17+2*i}], v[{96+2*i}:{97+2*i}]")
    for u in range(2):
        for a1 in range(2):
            for r in range(4):
                x = 16 + u*16 + a1*8 + 2*r
                A(f"v_pk_mul_f32 v[{x}:{x+1}], v[{x}:{x+1}], v[8:9] op_sel_hi:[1,0]")
            d = 48 + u*8 + a1*4
            for r in range(4):
                x = 16 + u*16 + a1*8 + 2*r
                A(f"v_cvt_pk_bf16_f32 v{d+r}, v{x}, v{x+1}")
    A("s_cmp_eq_u32 s53, 1")
    A("s_cbranch_scc1 K_ost_fast")
    for u in range(2):
        for a1 in range(2):
            d = 48 + u*8 + a1*4
            A(f"buffer_store_dwordx4 v[{d}:{d+3}], v9, s[20:23], s{42+u} offen offset:{a1*512} sc1")
    A("s_branch K_ost_done")
    A.label("K_ost_fast")
    for u in range(2):
        for a1 in range(2):
            d = 48 + u*8 + a1*4
            A(f"buffer_store_dwordx4 v[{d}:{d+3}], v9, s[20:23], s{42+u} offen offset:{a1*512}")
    A.label("K_ost_done")
    for u in range(2):
        for a1 in range(2):
            d = 48 + u*8 + a1*4
            A(f"ds_write_b128 v13, v[{d}:{d+3}] offset:{u*4096 + a1*512}")
    A(f"""
    s_lshl_b32 s28, s31, 2
    s_add_u32 s28, s28, s16
    s_lshl_b32 s28, s28, 2
    v_mov_b32 v10, s28
    v_mov_b32 v11, s50
    v_lshlrev_b32 v12, 2, v2
    v_lshrrev_b32 v13, 5, v2
    v_lshlrev_b32 v13, 4, v13
    v_bfe_u32 v14, v2, 4, 1
    v_lshlrev_b32 v14, 2, v14
    v_bfe_u32 v15, v2, 2, 2
    v_add_u32 v14, v14, v15
    v_add_u32 v13, v13, v14
    v_and_b32 v15, 3, v2
    v_lshlrev_b32 v15, 3, v15
    v_lshl_add_u32 v124, v13, 5, v15
    v_add_u32 v124, {REM}, v124
    v_lshl_add_u32 v13, v13, 8, v15
    s_lshl_b32 s28, s47, 2
    v_xor_b32 v14, s28, v14
    v_lshlrev_b32 v3, 4, v2
    s_lshl_b32 s28, s47, 10
    v_add_u32 v4, 1024, v3
    v_subrev_u32 v4, s28, v4
    v_add_u32 v3, s28, v3
    s_lshl_b32 s28, s30, 11
    v_add_u32 v5, s28, v3
    v_add_u32 v5, {OWN}, v5
    v_add_u32 v6, s28, v4
    v_add_u32 v6, {OWN}, v6            ; (qq=1)
    s_lshl_b32 s42, s17, 5
    s_lshl_b32 s28, s19, 2
    s_add_u32 s42, s42, s28
    s_lshl_b32 s42, s42, 14
    s_lshl_b32 s28, s30, 11
    s_add_u32 s42, s42, s28
    s_waitcnt lgkmcnt(0)
    v_lshl_add_u32 v56, v14, 5, v13
    v_xor_b32 v15, 1, v14
    v_lshl_add_u32 v57, v15, 5, v13
    v_xor_b32 v15, 2, v14
    v_lshl_add_u32 v58, v15, 5, v13
    v_xor_b32 v15, 3, v14
    v_lshl_add_u32 v59, v15, 5, v13
    v_add_u32 v60, 65536, v56
    v_add_u32 v61, 65536, v57
    v_add_u32 v62, 65536, v58
    v_add_u32 v63, 65536, v59
    """)
    stamp(A, "O issued", 0)
    bar()
    WB = [16, 36, 104]
    def wreads(T):
        buf = WB[T % 3]
        L = []
        for u in range(4):
            for sec in range(2):
                off = (32*T + 8*sec)*256
                base = 56 + u + (4 if off >= 65536 else 0)
                d = buf + u*4 + sec*2
                L.append(f"ds_read_b64_tr_b16 v[{d}:{d+1}], v{base} offset:{off % 65536}")
        for sec in range(2):
            d = buf + 16 + sec*2
            L.append(f"ds_read_b64_tr_b16 v[{d}:{d+1}], v124 offset:{(32*T + 8*sec)*32}")
        return L
    def wmm(T):
        buf = WB[T % 3]
        L = []
        for u in range(5):
            for qq in range(2 if u < 4 else 1):
                acc = 64 + (u*2+qq)*4
                cin = "0" if T == 0 else f"v[{acc}:{acc+3}]"
                b = 128 + (T*2+qq)*4
                L.append(f"v_mfma_f32_16x16x32_bf16 v[{acc}:{acc+3}], v[{buf+u*4}:{buf+u*4+3}], v[{b}:{b+3}], {cin}")
        return L
    def kstep(T, vm=None):
        w = f"s_waitcnt lgkmcnt({10 if T < 15 else 0})"
        if vm is not None: w = f"s_waitcnt vmcnt({vm}) lgkmcnt({10 if T < 15 else 0})"
        A(w)
        fill = wreads(T+2) if T < 14 else []
        mm_ = wmm(T)
        if fill:
            for i in range(5):
                A(mm_[i]); A(fill[i])
            for i in range(5, 9):
                A(mm_[i])
                if i == 5: A("s_waitcnt lgkmcnt(10)")
                A(fill[i])
            A(fill[9])
        else:
            for m in mm_: A(m)
    for T in range(4):
        for qq in range(2):
            d = 128 + (T*2+qq)*4
            A(f"ds_read_b128 v[{d}:{d+3}], v{5+qq} offset:{T*4096}")
    w0 = wreads(0)
    for x in w0[:6]: A(x)
    A("s_waitcnt lgkmcnt(6)")
    for x in w0[6:]: A(x)
    w1 = wreads(1)
    for x in w1[:5]: A(x)
    A("s_waitcnt lgkmcnt(5)")
    for x in w1[5:]: A(x)
    kstep(0)
    A("s_waitcnt vmcnt(0)")
    A("v_cmp_eq_u32 vcc, 0, v2")
    A("s_and_saveexec_b64 s[38:39], vcc")
    A("s_cmp_eq_u32 s53, 1")
    A("s_cbranch_scc1 K_fl_fast")
    A("buffer_store_dword v11, v10, s[20:23], s52 offen sc1")
    A("s_branch K_fl_done")
    A.label("K_fl_fast")
    A("buffer_store_dword v11, v10, s[20:23], s52 offen")
    A.label("K_fl_done")
    A("s_mov_b64 exec, s[38:39]")
    stamp(A, "flag sent", 0)
    kstep(1); kstep(2); kstep(3)
    def poll(nlanes, soff, tag):
        lab = f"K_poll{tag}"; done = f"K_polldone{tag}"
        A(f"""
        s_mov_b32 s45, 0
        v_cmp_gt_u32 vcc, {nlanes}, v2
        s_and_b64 s[38:39], vcc, exec
        """)
        A.label(lab)
        A(f"""
        s_mov_b64 exec, s[38:39]
        buffer_load_dword v10, v12, s[20:23], {soff} offen sc1
        s_waitcnt vmcnt(0)
        v_cmp_ne_u32 vcc, s50, v10
        s_mov_b64 exec, -1
        s_cmp_eq_u64 vcc, 0
        s_cbranch_scc1 {done}
        s_add_u32 s45, s45, 1
        s_cmp_gt_u32 s45, 0x40000
        s_cbranch_scc1 {done}
        s_sleep {P['sleep']}
        s_branch {lab}
        """)
        A.label(done)
    poll(16, "s52", 1)
    stamp(A, "flags1", 0)
    for hh in range(1, 4):
        A(f"s_add_u32 s28, s31, {hh}")
        A("s_and_b32 s28, s28, 3")
        A("s_lshl_b32 s28, s28, 14")
        A("s_add_u32 s28, s28, s42")
        for t in range(4):
            T = hh*4 + t
            if t: A("s_add_u32 s28, s28, 4096")
            for qq in range(2):
                d = 128 + (T*2+qq)*4
                A(f"buffer_load_dwordx4 v[{d}:{d+3}], v{3+qq}, s[20:23], s28 offen sc1")
    for T in range(4, 16):
        if T == 8: bar()
        kstep(T, vm=2*(15-T))
    stamp(A, "oproj done", 0)
    A(f"""
    s_lshl_b32 s28, s19, 3
    s_add_u32 s28, s28, s17
    s_lshl_b32 s28, s28, 2
    s_add_u32 s28, s28, s31
    s_mul_i32 s28, s28, 36864
    s_add_u32 s28, s28, {WS_PART}
    s_lshl_b32 s29, s30, 11
    s_add_u32 s28, s28, s29
    s_and_b32 s29, s31, 1
    s_xor_b32 s46, s29, 1
    s_lshl_b32 s46, s46, 15
    s_add_u32 s46, s46, s28
    s_lshl_b32 s29, s29, 12
    s_add_u32 s28, s28, s29
    s_lshl_b32 s29, s47, 14
    s_add_u32 s28, s28, s29
    s_mov_b32 s54, 0xffffff00
    s_bfe_u32 s29, s50, 0x80000
    v_mov_b32 v104, s29
    s_bfe_u32 s29, s50, 0x80008
    v_mov_b32 v105, s29
    s_bfe_u32 s29, s50, 0x80010
    v_mov_b32 v106, s29
    s_lshr_b32 s29, s50, 24
    v_mov_b32 v107, s29
    """)
    for u in range(5):
        for qq in range(2 if u < 4 else 1):
            acc = 64 + (u*2+qq)*4
            for r in range(4):
                A(f"v_and_or_b32 v{acc+r}, v{acc+r}, s54, v{104+r}")
            if u < 4:
                if qq == 0: A(f"s_add_u32 s29, s28, {u*4096}")
                A(f"buffer_store_dwordx4 v[{acc}:{acc+3}], v{3+qq}, s[20:23], s29 offen sc1")
            else:
                A(f"buffer_store_dwordx4 v[{acc}:{acc+3}], v3, s[20:23], s46 offen sc1")
    stamp(A, "part issued", 0)
    A("s_branch K_final")
    A.label("K_w4_final")
    A(f"""
    s_mov_b32 s20, s34
    s_mov_b32 s21, s35
    s_mov_b32 s22, {WS_SIZE}
    s_mov_b32 s23, 0x20000
    """)
    A.label("K_final")
    A(f"""
    s_lshl_b32 s28, s16, 6
    v_add_u32 v4, s28, v2
    v_lshrrev_b32 v5, 5, v4
    v_bfe_u32 v6, v4, 3, 2
    v_and_b32 v7, 7, v4
    v_lshlrev_b32 v8, 12, v5
    v_lshl_add_u32 v8, v6, 8, v8
    v_lshl_add_u32 v8, v7, 4, v8
    s_lshr_b32 s28, s19, 1
    s_lshl_b32 s28, s28, 10
    s_and_b32 s29, s19, 1
    s_lshl_b32 s29, s29, 7
    s_add_u32 s28, s28, s29
    s_lshl_b32 s29, s17, 2
    s_add_u32 s29, s29, s31
    s_mul_i32 s29, s29, 36864
    s_add_u32 s28, s28, s29
    s_add_u32 s42, s28, {WS_PART}
    v_mul_u32_u24 v9, 1152, v7
    v_lshl_add_u32 v9, v5, 5, v9
    v_lshl_add_u32 v9, v6, 3, v9
    s_lshl_b32 s28, s17, 6
    s_lshl_b32 s29, s19, 3
    s_add_u32 s28, s28, s29
    s_mul_i32 s28, s28, 1152
    s_mul_i32 s29, s31, 288
    s_add_u32 s43, s28, s29
    s_mov_b32 s24, s14
    s_mov_b32 s25, s15
    s_mov_b32 s26, {8*64*576*2}
    s_mov_b32 s27, 0x20000
    s_mov_b32 s55, 0x0c0c0400
    s_mov_b32 s56, 0x04000c0c
    s_mov_b32 s45, 0
    v_cmp_gt_u32 vcc, 288, v4
    s_and_saveexec_b64 s[38:39], vcc
    s_cbranch_execz K_fin_done
    """)
    A.label("K_fin_poll")
    for j in range(8):
        A(f"s_add_u32 s28, s42, {j*32*36864}")
        A(f"buffer_load_dwordx4 v[{16+4*j}:{19+4*j}], v8, s[20:23], s28 offen sc1")
    A("s_mov_b64 s[40:41], 0")
    for j in range(8):
        x = 16 + 4*j
        A(f"s_waitcnt vmcnt({7-j})")
        A(f"v_perm_b32 v10, v{x+1}, v{x}, s55")
        A(f"v_perm_b32 v11, v{x+3}, v{x+2}, s56")
        A("v_or_b32 v10, v10, v11")
        A("v_cmp_ne_u32 vcc, s50, v10")
        A("s_or_b64 s[40:41], s[40:41], vcc")
    A(f"""
    s_cmp_eq_u64 s[40:41], 0
    s_cbranch_scc1 K_fin_ok
    s_add_u32 s45, s45, 1
    s_cmp_gt_u32 s45, 0x40000
    s_cbranch_scc1 K_fin_ok
    s_sleep {P['sleep']}
    s_branch K_fin_poll
    """)
    A.label("K_fin_ok")
    stamp(A, "final data", 0)
    A("s_mov_b32 s54, 0xffffff00")
    for r in range(32):
        A(f"v_and_b32 v{16+r}, s54, v{16+r}")
    for j in range(1, 8):
        A(f"v_pk_add_f32 v[16:17], v[16:17], v[{16+4*j}:{17+4*j}]")
        A(f"v_pk_add_f32 v[18:19], v[18:19], v[{18+4*j}:{19+4*j}]")
    A("""
    v_cvt_pk_bf16_f32 v10, v16, v17
    v_cvt_pk_bf16_f32 v11, v18, v19
    buffer_store_dwordx2 v[10:11], v9, s[24:27], s43 offen
    """)
    A.label("K_fin_done")
    A("s_mov_b64 exec, s[38:39]")
    if P["dbgspan"]:
        A("""
        s_cmp_lg_u32 s16, 0
        s_cbranch_scc1 K_ds_done2
        s_waitcnt vmcnt(0)
        s_memrealtime s[58:59]
        s_waitcnt lgkmcnt(0)
        s_sub_u32 s58, s58, s50
        v_mov_b32 v10, s58
        s_and_b32 s28, s2, 7
        s_add_u32 s28, s28, 1
        s_lshl_b32 s28, s28, 2
        v_mov_b32 v11, s28
        v_cmp_eq_u32 vcc, 0, v2
        s_and_saveexec_b64 s[38:39], vcc
        s_cbranch_execz K_ds_done
        global_atomic_umax v11, v10, s[32:33]
        """)
        A.label("K_ds_done")
        A("s_mov_b64 exec, s[38:39]")
        A.label("K_ds_done2")
    if P["stamps"]:
        A("s_cmp_eq_u32 s16, 4")
        A("s_cbranch_scc1 K_st4")
        A("v_mov_b32 v0, v2")
        A("s_cmp_eq_u32 s16, 0")
        A("s_cbranch_scc0 K_end")
        stamp_write(A, 0, 0)
        A("s_endpgm")
        A.label("K_st4")
        stamp_write(A, 1, 256)
    A.label("K_end")
    A("s_endpgm")
    A.label("K_codeend")

A = Asm()
hdr = f"""; generated by gen5.py  {' '.join(sys.argv[2:])}
; @launch grid=(256,1,1) block=(512,1,1) lds=163840
.amdgcn_target "amdgcn-amd-amdhsa--gfx950"
.text
"""
kernel(A)
out = hdr + A.text() + '.section .rodata,"a"\n' + kernel_desc(NAME + "_kernel")
open(sys.argv[1], "w").write(out)
```

```python
import sys, math, struct
from asmlib import *

NAME = "standalone__gqa_block_cached__near_ridge"
P = dict(kv_aux="", w_aux="", wo_aux="", stamps=False, prefetch=True, rot=False, touch='no', aslots=4,
         ksched="0,1,3,5",
         sched="9:k4,k5;10:k6,v0;11:k7,v1;12:v2;13:v3;14:rem;17:v4;18:v5;19:v6,w0;20:v7,w1;21:w2;22:w3;23:w4;26:w5,w6,w7",
         fast=True,
         explead=2, sleep=1, cyc0=-1, cyc1=-1, cycb=-5, dbgspan=False, noncestep=5, h1st='sc1', h1ld='sc1')
for a in sys.argv[2:]:
    k, v = a.split("=")
    P[k] = type(P[k])(eval(v)) if not isinstance(P[k], str) else v

WS_O = 0
WS_PART = 0x400000
WS_FLAG1 = 0x1000000
WS_FLAG2 = 0x1010000
WS_STAMP = 0x2000000
WS_SIZE = 0x4000000

SLOT = 16384
KV_SLOT = [i * SLOT for i in range(8)]
NS = P['aslots']
WQ_SLOT = [(8 - NS + i) * SLOT for i in range(NS)]
X_SLOT = [131072 + 8192 * i for i in range(NS)]
QX = 131072 + (8192 if NS == 4 else 0)
MX = 131072 + 24576
NX = MX + 1024
OX = 5 * 16384
LX = 147456
OWN = 147456
REM = 131072
WS_XCC = 0x1020000
SCALE = math.log2(math.e) / math.sqrt(128.0)
def f32bits(x): return struct.unpack("<I", struct.pack("<f", x))[0]
NBAR = 29

STAMPS_BY_ROLE = {}
def stamp(A, name, role):
    if not P["stamps"]: return
    lst = STAMPS_BY_ROLE.setdefault(role, [])
    k = len(lst)
    assert k < 13, "too many stamps"
    lst.append(name)
    base = 64 if role != 2 else 76
    A(f"s_memrealtime s[{base+2*k}:{base+1+2*k}]")

def stamp_write(A, role, tid):
    if not P["stamps"]: return
    n = len(STAMPS_BY_ROLE.get(role, []))
    A("s_waitcnt vmcnt(0)")
    A("s_memrealtime s[62:63]")
    A("s_waitcnt lgkmcnt(0)")
    A(f"""
    s_lshl_b32 s28, s2, 6
    s_add_u32 s28, s28, {WS_STAMP + role*0x10000}
    v_mov_b32 v20, s28
    s_sub_u32 s94, s94, s92
    v_mov_b32 v24, s94
    v_mov_b32 v25, s60
    v_mov_b32 v26, s62
    """)
    for k in range(13):
        A(f"v_mov_b32 v{27+k}, s{(64 if role != 2 else 76)+2*k}" if k < n else f"v_mov_b32 v{27+k}, 0")
    lab = A.newlabel("sk")
    A(f"""
    v_cmp_eq_u32 vcc, {tid}, v0
    s_and_saveexec_b64 s[38:39], vcc
    s_cbranch_execz {lab}
    global_store_dwordx4 v20, v[24:27], s[34:35]
    global_store_dwordx4 v20, v[28:31], s[34:35] offset:16
    global_store_dwordx4 v20, v[32:35], s[34:35] offset:32
    global_store_dwordx4 v20, v[36:39], s[34:35] offset:48
    """)
    A.label(lab)
    A("s_mov_b64 exec, s[38:39]")

def interleave(A, mf, fill, lead=0, per=None):
    n = len(mf); k = 0
    for _ in range(lead):
        if k < len(fill): A(fill[k]); k += 1
    rem = len(fill) - k
    for i, m in enumerate(mf):
        A(m)
        tgt = lead + ((rem * (i + 1) + n - 1) // n if per is None else per * (i + 1))
        while k < min(tgt, len(fill)):
            A(fill[k]); k += 1
    while k < len(fill):
        A(fill[k]); k += 1

def loaders(A):
    A("s_sub_u32 s30, s16, 4")
    A("""
    v_lshrrev_b32 v7, 4, v2            ; l>>4
    v_and_b32 v16, 15, v2
    s_cmp_eq_u32 s30, 3
    s_cbranch_scc1 K_kload
    s_cmp_eq_u32 s30, 0
    s_cbranch_scc1 K_xsetup
    """)
    A(f"""
    v_lshlrev_b32 v17, 2, v7
    v_xor_b32 v16, v16, v17
    v_lshlrev_b32 v16, 4, v16
    v_lshl_add_u32 v20, v7, 13, v16
    """)
    for jj in range(1, 8):
        A(f"v_add_u32 v{20+jj}, {32768*jj - 1024*(jj&3)}, v20")
    A(f"""
    s_sub_u32 s29, s30, 1
    s_lshl_b32 s40, s18, 8
    s_lshl_b32 s28, s29, 18
    s_add_u32 s40, s40, s28            ; soffset
    s_lshl_b32 s42, s29, 13
    s_add_u32 s42, s42, {WQ_SLOT[0]}
    s_mov_b32 s41, {64*8192}
    s_mov_b32 s43, 16384
    s_waitcnt lgkmcnt(0)
    s_mov_b32 s20, s10
    s_mov_b32 s21, s11
    s_mov_b32 s22, {576*4096*2}
    s_branch K_asetup
    """)
    A.label("K_xsetup")
    A(f"""
    v_lshrrev_b32 v5, 3, v2
    v_mul_u32_u24 v5, 1152, v5
    v_and_b32 v6, 7, v2
    v_xor_b32 v6, v6, v7
    v_lshl_add_u32 v20, v6, 4, v5       ; par 0
    v_xor_b32 v6, 4, v6
    v_lshl_add_u32 v21, v6, 4, v5       ; par 1
    """)
    for j in range(7, 0, -1):
        A(f"v_add_u32 v{20+j}, {9216*j - 1024*(j&3)}, v{20+(j&1)}")
    A(f"""
    s_mul_i32 s40, s17, 73728
    s_mov_b32 s42, {X_SLOT[0]}
    s_mov_b32 s41, 128
    s_mov_b32 s43, 8192
    s_waitcnt lgkmcnt(0)
    s_mov_b32 s20, s4
    s_mov_b32 s21, s5
    s_mov_b32 s22, {8*64*576*2}
    """)
    A.label("K_asetup")
    A("s_mov_b32 s23, 0x20000")
    A("s_mov_b32 s44, 0")
    if P["rot"]:
        A("""
        s_mul_i32 s44, s31, 3
        s_add_u32 s44, s44, s17
        s_cmp_ge_u32 s44, 9
        s_cselect_b32 s28, 9, 0
        s_sub_u32 s44, s44, s28
        s_mul_i32 s28, s44, s41
        s_add_u32 s40, s40, s28
        """)
    A(f"""
    s_mul_i32 s47, s41, 9              ; soffset wrap
    s_mul_i32 s48, s43, {NS}              ; lds wrap
    s_mov_b32 s45, 0
    s_mov_b32 s46, 0
    """)
    stamp(A, "ready", 1)
    A.label("A_loop")
    A(f"""
    s_cmp_lt_u32 s45, {NS-1}
    s_cbranch_scc1 A_issue
    s_waitcnt vmcnt({8*(NS-2)})
    """)
    if P["stamps"]:
        A("s_cmp_eq_u32 s45, 3\ns_cbranch_scc0 A_st1\ns_memrealtime s[70:71]")
        A.label("A_st1")
        A("s_cmp_eq_u32 s45, 4\ns_cbranch_scc0 A_st1b\ns_memrealtime s[72:73]")
        A.label("A_st1b")
    A("s_barrier")
    A.label("A_issue")
    A("s_mov_b32 m0, s42")
    A("s_add_u32 s28, s42, 4096")
    for j in range(4):
        A(f"buffer_load_dwordx4 v{20+j}, s[20:23], s40 offen offset:{j*1024} {P['w_aux']} lds")
    A("s_mov_b32 m0, s28")
    A("s_add_u32 s44, s44, 1")
    for j in range(4, 8):
        A(f"buffer_load_dwordx4 v{20+j}, s[20:23], s40 offen offset:{(j&3)*1024} {P['w_aux']} lds")
    if P["stamps"]:
        A("s_cmp_eq_u32 s45, 0\ns_cbranch_scc0 A_st2\ns_memrealtime s[66:67]")
        A.label("A_st2")
        A("s_cmp_eq_u32 s45, 1\ns_cbranch_scc0 A_st3\ns_memrealtime s[68:69]")
        A.label("A_st3")
    A("""
    s_add_u32 s40, s40, s41
    s_cmp_lt_u32 s44, 9
    s_cbranch_scc1 A_nowrap
    s_mov_b32 s44, 0
    s_sub_u32 s40, s40, s47
    """)
    A.label("A_nowrap")
    A(f"""
    s_add_u32 s42, s42, s43
    s_add_u32 s46, s46, 1
    s_cmp_lt_u32 s46, {NS}
    s_cbranch_scc1 A_nowrap2
    s_mov_b32 s46, 0
    s_sub_u32 s42, s42, s48
    """)
    A.label("A_nowrap2")
    A("""
    s_add_u32 s45, s45, 1
    s_cmp_lt_u32 s45, 9
    s_cbranch_scc1 A_loop
    """)
    kv_setup(A)
    for k in range(NS-2, -1, -1):
        A(f"s_waitcnt vmcnt({8*k})")
        A("s_barrier")
    if P["stamps"]:
        STAMPS_BY_ROLE[1] += ["T0 issued", "T1 issued", "T0 landed", "T1 landed"]
    stamp(A, "A done", 1)
    A("s_branch K_common")

    A.label("K_kload")
    kv_setup(A)
    stamp(A, "ready", 2)
    ks = [int(x) for x in P["ksched"].split(",")]
    def issueK_full(n):
        A(f"s_add_u32 s28, s44, {n*16384}")
        A(f"s_and_b32 s28, s28, 0x1ffff")
        A(f"s_add_u32 s28, s28, s40")
        for grp in range(4):
            A(f"s_mov_b32 m0, {KV_SLOT[n] + grp*4096}")
            if grp: A(f"s_add_u32 s28, s28, 4096")
            else: A("s_nop 0")
            for j in range(4):
                A(f"buffer_load_dwordx4 v{10+j}, s[20:23], s28 offen offset:{j*1024} {P['kv_aux']} lds")
    issued = 0
    while issued < 4 and ks[issued] == 0:
        issueK_full(issued); issued += 1
    for bi in range(9):
        A("s_barrier")
        while issued < 4 and ks[issued] - 1 <= bi:
            issueK_full(issued); issued += 1
    assert issued == 4
    A.label("K_common")
    log = []
    for n in range(4): log.append((("kv", n), 16))
    def after(tag):
        idx = max(i for i, (t, c) in enumerate(log) if t == tag)
        return sum(c for t, c in log[idx+1:])
    A("s_lshl_b32 s43, s30, 12")
    A("s_add_u32 s41, s40, s43")
    def issueKV(n):
        isV = n >= 8; c = n & 7
        srd = "s[24:27]" if isV else "s[20:23]"
        A(f"s_add_u32 s28, s44, {c*16384}")
        A(f"s_and_b32 s28, s28, 0x1ffff")
        A(f"s_add_u32 m0, s43, {KV_SLOT[c]}")
        A(f"s_add_u32 s28, s28, s41")
        for j in range(4):
            vo = 8 if isV else 10 + j
            A(f"buffer_load_dwordx4 v{vo}, {srd}, s28 offen offset:{j*1024} {P['kv_aux']} lds")
        log.append((("kv", n), 4))
    def wo_setup():
        A(f"""
        s_mov_b32 s20, s12
        s_mov_b32 s21, s13
        s_mov_b32 s22, {4096*576*2}
        v_lshrrev_b32 v7, 4, v2
        v_and_b32 v6, 15, v2
        v_mul_u32_u24 v5, 1152, v7
        v_lshlrev_b32 v16, 1, v7
        v_xor_b32 v16, v6, v16             ; (l&15) ^ ((l>>4)<<1)
        v_lshl_add_u32 v20, v16, 4, v5     ; par 0
        v_xor_b32 v16, 8, v16              ; ^ (4<<1)
        v_lshl_add_u32 v21, v16, 4, v5     ; par 1
        v_add_u32 v22, {2*3584}, v20
        v_add_u32 v23, {3*3584}, v21
        v_add_u32 v21, {1*3584}, v21
        v_lshrrev_b32 v5, 3, v2
        v_mul_u32_u24 v5, 1152, v5
        v_and_b32 v6, 7, v2
        v_lshlrev_b32 v16, 1, v7
        v_xor_b32 v6, v6, v16              ; (l&7) ^ ((l>>4)<<1)
        v_lshl_add_u32 v24, v6, 4, v5
        v_add_u32 v25, {1*(8*1152-1024)}, v24
        v_add_u32 v26, {2*(8*1152-1024)}, v24
        v_add_u32 v27, {3*(8*1152-1024)}, v24
        s_mul_i32 s45, s19, {512*1152}
        s_lshl_b32 s28, s31, 8
        s_add_u32 s46, s45, s28
        s_mul_i32 s28, s30, {16*1152}
        s_add_u32 s46, s46, s28            ; + 16 w' rows
        s_lshl_b32 s49, s31, 7
        s_mul_i32 s28, s31, {128*1152}
        s_add_u32 s45, s45, s28
        s_mul_i32 s28, s30, {32*1152}
        s_add_u32 s45, s45, s28            ; + 32 w' rows
        s_add_u32 s45, s45, 1024           ; cols 512..575
        """)
    def issueWO(t):
        A(f"s_add_u32 s28, s49, {t*64}")
        A(f"s_and_b32 s28, s28, 511")
        A(f"s_mul_i32 s28, s28, 1152")
        A(f"s_add_u32 m0, s43, {KV_SLOT[t]}")
        A(f"s_add_u32 s28, s28, s46")
        for j in range(4):
            A(f"buffer_load_dwordx4 v{20+j}, s[20:23], s28 offen offset:{j*1024} {P['wo_aux']} lds")
        log.append((("wo", t), 4))
    def issueREM():
        A(f"s_add_u32 m0, s43, {REM}")
        A("s_nop 0")
        for j in range(4):
            A(f"buffer_load_dwordx4 v{24+j}, s[20:23], s45 offen offset:{j*1024} {P['wo_aux']} lds")
        log.append((("rem", 0), 4))
    sched = {}
    for part in P["sched"].split(";"):
        k, v = part.split(":"); sched[int(k)] = v.split(",")
    def earliest(it):
        if it == "rem": return 10
        n = int(it[1:])
        if it[0] == "k": return 8 if (n == 4 and NS == 3) else 9
        if it[0] == "v": return 10 + n
        if it[0] == "w": return 18 + n if n <= 4 else 26
    for k, v in sched.items():
        for it in v: assert k >= earliest(it), (k, it)
    setup_done = False
    for bi in range(9, NBAR):
        need = None
        if 9 <= bi <= 16: need = ("kv", bi - 9)
        elif 17 <= bi <= 24: need = ("kv", bi - 17 + 8)
        if need is not None:
            A(f"s_waitcnt vmcnt({min(63, after(need))})")
            if need[1] in (0, 7, 8, 11, 12, 15): stamp(A, f"tile{need[1]}", 2)
        if bi == 27:
            A(f"s_waitcnt vmcnt({min(63, after(('wo', 4)))})")
        if bi == 28:
            A("s_waitcnt vmcnt(0)")
        A("s_barrier")
        if bi == 17:
            A(f"v_mov_b32 v19, {NX}")
            A("ds_read_b32 v19, v19")
            A("s_waitcnt lgkmcnt(0)")
            A("v_readfirstlane_b32 s50, v19")
        for it in sched.get(bi, []):
            if it[0] in "wr" and not setup_done:
                assert all(any(t == ("kv", n) for t, c in log) for n in range(8)), "K tiles must be issued before wo setup"
                wo_setup(); setup_done = True
            if it == "rem": issueREM()
            elif it[0] == "k": issueKV(int(it[1:]))
            elif it[0] == "v": issueKV(8 + int(it[1:]))
            elif it[0] == "w": issueWO(int(it[1:]))
    if P["stamps"]:
        A("s_cmp_eq_u32 s16, 4")
        A("s_cbranch_scc1 K_st4")
        A("s_cmp_eq_u32 s16, 7")
        A("s_cbranch_scc0 K_end")
        stamp_write(A, 2, 448)
    A("s_endpgm")

def kv_setup(A):
    A(f"""
    v_lshrrev_b32 v7, 4, v2
    v_and_b32 v6, 15, v2
    v_lshlrev_b32 v5, 8, v7
    v_xor_b32 v9, v6, v7
    v_lshl_add_u32 v10, v9, 4, v5
    v_xor_b32 v11, 0x40, v10
    v_xor_b32 v12, 0x80, v10
    v_xor_b32 v13, 0xc0, v10
    v_lshlrev_b32 v9, 2, v7
    v_xor_b32 v6, v6, v9
    v_lshl_add_u32 v8, v6, 4, v5
    s_lshr_b32 s28, s18, 1
    s_lshl_b32 s40, s17, 4
    s_add_u32 s40, s40, s28
    s_lshl_b32 s40, s40, 17
    s_and_b32 s44, s18, 1
    s_lshl_b32 s44, s44, 16
    s_waitcnt lgkmcnt(0)
    s_mov_b32 s20, s6
    s_mov_b32 s21, s7
    s_mov_b32 s22, 0x1000000
    s_mov_b32 s23, 0x20000
    s_mov_b32 s24, s8
    s_mov_b32 s25, s9
    s_mov_b32 s26, 0x1000000
    s_mov_b32 s27, 0x20000
    """)

def kernel(A):
    kn = NAME + "_kernel"
    A(f".globl {kn}\n.p2align 8\n.type {kn},@function\n{kn}:")
    if P["prefetch"]:
        A("s_getpc_b64 s[36:37]")
        A.label("K_pc")
    if P["stamps"]: A("s_memrealtime s[60:61]")
    A("""
    s_load_dwordx4 s[4:7], s[0:1], 0
    s_load_dwordx4 s[8:11], s[0:1], 16
    s_load_dwordx4 s[12:15], s[0:1], 32
    s_load_dwordx4 s[32:35], s[0:1], 48
    s_cmp_ge_u32 s2, 256
    s_cbranch_scc1 K_end
    """)
    if P["prefetch"]:
        A(f"""
        v_lshlrev_b32 v250, 7, v0
        v_mov_b32 v251, s37
        v_add_co_u32 v250, vcc, s36, v250
        v_lshrrev_b32 v1, 6, v0
        v_and_b32 v2, 63, v0
        v_addc_co_u32 v251, vcc, 0, v251, vcc
        v_cmp_gt_u32 vcc, (K_codeend-K_pc+127)/128, v0
        v_readfirstlane_b32 s16, v1
        s_and_saveexec_b64 s[38:39], vcc
        s_cbranch_execz K_nopf
        global_load_dword v252, v[250:251], off
        """)
        A.label("K_nopf")
        A("s_mov_b64 exec, s[38:39]")
    else:
        A("""
        v_lshrrev_b32 v1, 6, v0
        v_and_b32 v2, 63, v0
        s_nop 0
        v_readfirstlane_b32 s16, v1
        """)
    A("""
    s_and_b32 s19, s2, 7           ; j
    s_lshr_b32 s28, s2, 3
    s_and_b32 s31, s28, 3          ; i
    s_lshl_b32 s18, s19, 2
    s_add_u32 s18, s18, s31        ; hq
    s_lshr_b32 s17, s2, 5          ; b
    s_cmp_lt_u32 s16, 4
    s_cbranch_scc1 K_compute
    """)
    loaders(A)
    compute(A, kn)

def compute(A, kn):
    A.align(6)
    A.label("K_compute")
    A(f"""
    s_memrealtime s[48:49]
    s_waitcnt lgkmcnt(0)
    s_or_b32 s48, s48, 8
    s_and_b32 s48, s48, 0xfffffff8
    s_or_b32 s28, s16, s2
    s_cmp_lg_u32 s28, 0
    s_cbranch_scc1 K_nononce
    v_mov_b32 v246, s48
    v_mov_b32 v248, 0
    v_cmp_eq_u32 vcc, 0, v2
    s_and_saveexec_b64 s[38:39], vcc
    global_store_dword v248, v246, s[32:33] sc1
    s_mov_b64 exec, s[38:39]
    """)
    A.label("K_nononce")
    A(f"""
    s_mov_b32 s20, s34
    s_mov_b32 s21, s35
    s_mov_b32 s22, {WS_SIZE}
    s_mov_b32 s23, 0x20000
    s_lshl_b32 s28, s17, 3
    s_add_u32 s28, s28, s19
    s_lshl_b32 s28, s28, 7             ; group*128
    s_add_u32 s51, s28, {WS_XCC}
    s_add_u32 s52, s28, {WS_FLAG1}
    """)
    if P["touch"] == "compute":
        A(f"""
        s_lshr_b32 s28, s2, 3
        s_mul_i32 s29, s16, 36
        v_add_u32 v240, s29, v2
        v_lshrrev_b32 v241, 3, v240
        s_mul_i32 s29, s28, 18
        v_add_u32 v241, s29, v241          ; row
        v_lshlrev_b32 v241, 13, v241
        v_and_b32 v242, 7, v240
        v_lshl_add_u32 v241, v242, 7, v241
        s_lshl_b32 s29, s19, 10
        v_add_u32 v241, s29, v241          ; + j*1024
        s_mul_i32 s29, s28, 144
        v_add_u32 v242, s29, v240
        v_lshlrev_b32 v242, 7, v242        ; x line * 128
        v_cmp_gt_u32 vcc, 36, v2
        s_and_saveexec_b64 s[38:39], vcc
        global_load_dword v243, v241, s[10:11]
        global_load_dword v244, v242, s[4:5]
        s_mov_b64 exec, s[38:39]
        """)
    A("""
    s_and_b32 s30, s16, 1          ; qb
    s_lshr_b32 s47, s16, 1
    v_and_b32 v3, 31, v2           ; q
    v_lshrrev_b32 v4, 5, v2        ; h
    v_lshrrev_b32 v5, 4, v2        ; g
    v_and_b32 v6, 15, v2           ; i
    v_lshrrev_b32 v7, 2, v6        ; r4
    v_and_b32 v8, 3, v2            ; c
    s_lshl_b32 s28, s30, 5
    v_add_u32 v9, s28, v3          ; row
    v_lshrrev_b32 v10, 1, v9
    v_and_b32 v10, 7, v10
    v_xor_b32 v10, v4, v10
    v_lshlrev_b32 v10, 4, v10
    v_lshl_add_u32 v10, v9, 7, v10
    v_lshrrev_b32 v13, 1, v5
    v_lshl_add_u32 v13, v13, 3, v7
    v_lshlrev_b32 v13, 8, v13
    v_and_b32 v14, 1, v5
    v_lshl_add_u32 v13, v14, 5, v13
    v_and_b32 v14, 1, v8
    v_lshl_add_u32 v15, v14, 4, v13
    v_lshrrev_b32 v14, 1, v8
    v_lshl_add_u32 v15, v14, 3, v15
    s_lshl_b32 s28, s47, 1
    v_xor_b32 v14, s28, v7
    v_lshl_add_u32 v11, v14, 6, v15
    v_xor_b32 v14, 1, v14
    v_lshl_add_u32 v12, v14, 6, v15
    """)
    for ks_ in range(4):
        A(f"v_xor_b32 v{64+ks_}, {ks_<<5}, v10")
        A(f"v_add_u32 v{64+ks_}, {X_SLOT[0]}, v{64+ks_}")
    A(f"v_add_u32 v68, {WQ_SLOT[0]}, v11")
    A(f"v_add_u32 v69, {WQ_SLOT[0]}, v12")
    stamp(A, "pre B0", 0)
    nb = [0]
    def bar():
        if P["stamps"] and nb[0] == P["cycb"] + 1: A("s_memtime s[94:95]")
        A("s_barrier")
        if P["stamps"] and nb[0] == P["cycb"]: A("s_memtime s[92:93]")
        if nb[0] in (0, 9, 17, 25): stamp(A, f"B{nb[0]}", 0)
        if P["stamps"] and nb[0] == P["cyc0"]: A("s_memtime s[92:93]")
        if P["stamps"] and nb[0] == P["cyc1"]: A("s_memtime s[94:95]")
        nb[0] += 1
    for c in range(9):
        bar()
        if c == P["noncestep"]:
            A("v_mov_b32 v248, 0")
            A("global_load_dword v246, v248, s[32:33] sc1")
        sl = c % NS
        def rd(ks):
            L = [f"ds_read_b128 v[{48+4*ks}:{51+4*ks}], v{64+ks} offset:{sl*8192}"]
            for tt in range(2):
                for sec in range(2):
                    d = 16 + tt*16 + ks*4 + sec*2
                    L.append(f"ds_read_b64_tr_b16 v[{d}:{d+1}], v{68+tt} offset:{sl*16384 + (16*ks+4*sec)*256}")
            return L
        def mm(ks):
            L = []
            for tt in range(2):
                acc = 128 + 16*tt
                cin = "0" if (c == 0 and ks == 0) else f"v[{acc}:{acc+15}]"
                L.append(f"v_mfma_f32_32x32x16_bf16 v[{acc}:{acc+15}], v[{16+tt*16+ks*4}:{19+tt*16+ks*4}], v[{48+4*ks}:{51+4*ks}], {cin}")
            return L
        for x in rd(0) + rd(1) + rd(2): A(x)
        A("s_waitcnt lgkmcnt(10)")
        m = mm(0); r3 = rd(3)
        A(m[0]); [A(x) for x in r3[:3]]; A(m[1]); [A(x) for x in r3[3:]]
        A("s_waitcnt lgkmcnt(10)"); [A(x) for x in mm(1)]
        A("s_waitcnt lgkmcnt(5)"); [A(x) for x in mm(2)]
        A("s_waitcnt lgkmcnt(0)"); [A(x) for x in mm(3)]
    A(f"""
    s_lshl_b32 s28, s47, 5
    v_add_u32 v10, s28, v3
    v_and_b32 v11, 15, v10
    v_xor_b32 v11, v4, v11
    v_lshlrev_b32 v11, 4, v11
    v_lshl_add_u32 v10, v10, 8, v11
    v_lshlrev_b32 v9, 4, v2              ; lane*16
    s_lshl_b32 s28, s16, 12
    v_add_u32 v13, s28, v9
    v_add_u32 v13, {QX}, v13
    s_lshl_b32 s28, s30, 12
    v_add_u32 v12, s28, v9
    v_add_u32 v12, {QX}, v12
    s_waitcnt vmcnt(0)
    """)
    for s in range(8):
        A(f"v_xor_b32 v{80+s}, {s<<5}, v10")
    for s in range(8):
        A(f"v_add_u32 v{88+s}, 65536, v{80+s}")
    A("s_cmp_lg_u32 s16, 0")
    A("s_cbranch_scc1 K_nononce2")
    A("s_mov_b32 s45, 0")
    A.label("K_nonce_chk")
    A(f"""
    v_readfirstlane_b32 s28, v246
    s_cmp_lg_u32 s28, 0
    s_cbranch_scc1 K_nonce_ok
    s_add_u32 s45, s45, 1
    s_cmp_gt_u32 s45, 0x40000
    s_cbranch_scc1 K_nonce_ok
    global_load_dword v246, v248, s[32:33] sc1
    s_waitcnt vmcnt(0)
    s_branch K_nonce_chk
    """)
    A.label("K_nonce_ok")
    A(f"""
    v_mov_b32 v247, {NX}
    v_cmp_eq_u32 vcc, 0, v2
    s_and_saveexec_b64 s[38:39], vcc
    ds_write_b32 v247, v246
    s_getreg_b32 s28, hwreg(HW_REG_XCC_ID, 0, 4)
    s_and_b32 s28, s28, 7
    v_or_b32 v246, s28, v246
    s_lshl_b32 s28, s31, 2
    v_mov_b32 v247, s28
    buffer_store_dword v246, v247, s[20:23], s51 offen sc1
    s_mov_b64 exec, s[38:39]
    """)
    A.label("K_nononce2")
    for i in range(16):
        A(f"v_cvt_pk_bf16_f32 v{16+i}, v{128+2*i}, v{129+2*i}")
    for f in range(4):
        A(f"ds_write_b128 v13, v[{16+4*f}:{19+4*f}] offset:{f*1024}")
    A("s_waitcnt lgkmcnt(0)")
    def kreads(c):
        buf = 16 + 32*(c & 1)
        return [f"ds_read_b128 v[{buf+4*s}:{buf+4*s+3}], v{(80 if c < 4 else 88)+s} offset:{(c&3)*16384}" for s in range(8)]
    def kmm(c):
        buf = 16 + 32*(c & 1); acc = 128 + 16*c
        return [f"v_mfma_f32_32x32x16_bf16 v[{acc}:{acc+15}], v[{buf+4*s}:{buf+4*s+3}], v[{96+4*s}:{99+4*s}], " + ("0" if s == 0 else f"v[{acc}:{acc+15}]") for s in range(8)]
    def kmax(c):
        acc = 128 + 16*c
        return [(f"v_max_f32 v15, v{acc}, v{acc+1}" if (c == 0 and s == 0) else f"v_max3_f32 v15, v15, v{acc+2*s}, v{acc+2*s+1}") for s in range(8)]
    for c in range(9):
        if c < 8: bar()
        if c == 0:
            for s in range(8):
                A(f"ds_read_b128 v[{96+4*s}:{99+4*s}], v12 offset:{(s>>2)*8192+(s&3)*1024}")
            kr = kreads(0)
            for x in kr[:4]: A(x)
            A("s_waitcnt lgkmcnt(8)")
            for x in kr[4:]: A(x)
            A("s_waitcnt lgkmcnt(0)")
        else:
            fill = kreads(c) if c < 8 else []
            if c >= 2: fill = fill + kmax(c-2)
            interleave(A, kmm(c-1), fill, lead=2 if c < 8 else 0, per=2)
            if c < 8: A("s_waitcnt lgkmcnt(0)")
    A(f"""
    v_lshrrev_b32 v66, 1, v5
    v_lshl_add_u32 v66, v66, 2, v7
    s_lshl_b32 s28, s47, 5
    v_add_u32 v66, s28, v66
    v_lshlrev_b32 v66, 8, v66
    v_and_b32 v67, 1, v5
    v_lshl_add_u32 v66, v67, 5, v66
    v_lshl_add_u32 v66, v8, 3, v66
    s_lshl_b32 s28, s47, 1
    v_xor_b32 v67, s28, v7
    """)
    for u in range(4):
        A(f"v_xor_b32 v68, {u}, v67")
        A(f"v_lshl_add_u32 v{3+u}, v68, 6, v66")
    A(f"""
    v_lshlrev_b32 v9, 2, v2
    s_lshl_b32 s28, s16, 8
    v_add_u32 v13, s28, v9
    v_add_u32 v13, {MX}, v13
    s_xor_b32 s28, s16, 2
    s_lshl_b32 s28, s28, 8
    v_add_u32 v14, s28, v9
    v_add_u32 v14, {MX}, v14
    v_mov_b32 v8, 0x3f803f80
    v_mov_b32 v9, 0x3f803f80
    v_mov_b32 v10, 0x3f803f80
    v_mov_b32 v11, 0x3f803f80
    s_mov_b32 s40, {f32bits(SCALE):#x}
    """)
    for x in kmax(7): A(x)
    A(f"""
    v_mov_b32 v12, v15
    s_nop 1
    v_permlane32_swap_b32 v15, v12
    s_nop 1
    v_max_f32 v7, v15, v12
    ds_write_b32 v13, v7
    s_waitcnt lgkmcnt(0)
    """)
    def exps(c, ks):
        sacc = 128 + 16*c + 8*ks
        L = []
        for j in range(8): L.append(f"v_fma_f32 v{sacc+j}, v{sacc+j}, s40, v7")
        for j in range(8): L.append(f"v_exp_f32 v{sacc+j}, v{sacc+j}")
        for j in range(4): L.append(f"v_cvt_pk_bf16_f32 v{sacc+j}, v{sacc+2*j}, v{sacc+2*j+1}")
        return L
    def vreads(c, ks):
        L = []
        for u in range(4):
            a = (3 if c < 4 else 12) + u
            for sec in range(2):
                d = 96 + ks*16 + u*4 + sec*2
                L.append(f"ds_read_b64_tr_b16 v[{d}:{d+1}], v{a} offset:{(c&3)*16384 + (16*ks+8*sec)*256}")
        return L
    def vmm(c, ks):
        pb = 128 + 16*c + 8*ks
        L = []
        for u in range(4):
            acc = 16 + 16*u
            cin = "0" if (c == 0 and ks == 0) else f"v[{acc}:{acc+15}]"
            L.append(f"v_mfma_f32_32x32x16_bf16 v[{acc}:{acc+15}], v[{96+ks*16+u*4}:{99+ks*16+u*4}], v[{pb}:{pb+3}], {cin}")
        cin = "0" if (c == 0 and ks == 0) else "v[80:95]"
        L.append(f"v_mfma_f32_32x32x16_bf16 v[80:95], v[8:11], v[{pb}:{pb+3}], {cin}")
        return L
    lead = P["explead"]
    expq = [(c, ks) for c in range(8) for ks in range(2)]
    ei = 0
    for c in range(8):
        bar()
        if c == 0:
            A(f"""
            v_mov_b32 v13, {NX}
            ds_read_b32 v12, v14
            ds_read_b32 v13, v13
            s_waitcnt lgkmcnt(0)
            v_readfirstlane_b32 s50, v13
            v_max_f32 v7, v7, v12
            v_mul_f32 v7, s40, v7
            v_sub_f32 v7, 0, v7
            """)
            for u in range(4): A(f"v_add_u32 v{12+u}, 65536, v{3+u}")
            A("v_lshlrev_b32 v0, 2, v2")
            A("v_and_b32 v0, 12, v0")
            A("buffer_load_dword v1, v0, s[20:23], s51 offen sc1")
            for x in vreads(0, 0): A(x)
            while ei < lead:
                for x in exps(*expq[ei]): A(x)
                ei += 1
            A("s_waitcnt lgkmcnt(4)")
            for x in vreads(0, 1): A(x)
            A("s_waitcnt lgkmcnt(8)")
            fill = []
            if ei < 16: fill = exps(*expq[ei]); ei += 1
            interleave(A, vmm(0, 0), fill)
            A("s_waitcnt lgkmcnt(0)")
        else:
            fill = vreads(c, 0)
            if ei < 16: fill = fill + exps(*expq[ei]); ei += 1
            interleave(A, vmm(c-1, 1), fill, lead=4)
            fill = vreads(c, 1)
            if ei < 16: fill = fill + exps(*expq[ei]); ei += 1
            for x in fill[:4]: A(x)
            A("s_waitcnt lgkmcnt(4)")
            interleave(A, vmm(c, 0), fill[4:])
            A("s_waitcnt lgkmcnt(0)")
    for x in vmm(7, 1): A(x)
    assert ei == 16
    A(f"""
    v_lshlrev_b32 v3, 4, v2
    s_lshl_b32 s28, s16, 13
    v_add_u32 v4, s28, v3
    v_add_u32 v4, {OX}, v4
    s_xor_b32 s29, s16, 2
    s_lshl_b32 s28, s29, 13
    v_add_u32 v5, s28, v3
    v_add_u32 v5, {OX}, v5
    v_lshlrev_b32 v6, 2, v2
    s_lshl_b32 s28, s16, 8
    v_add_u32 v7, s28, v6
    v_add_u32 v7, {LX}, v7
    s_lshl_b32 s28, s29, 8
    v_add_u32 v6, s28, v6
    v_add_u32 v6, {LX}, v6
    """)
    A.nop(4)
    for i in range(8):
        if i == 4: A.nop(4)
        A(f"ds_write_b128 v4, v[{48+4*i}:{51+4*i}] offset:{i*1024}")
    A("ds_write_b32 v7, v80")
    A(f"""
    v_bfe_u32 v9, v2, 4, 1
    v_lshlrev_b32 v9, 10, v9
    v_lshrrev_b32 v10, 5, v2
    v_lshl_add_u32 v9, v10, 8, v9
    v_and_b32 v10, 15, v2
    v_lshl_add_u32 v9, v10, 4, v9
    s_lshl_b32 s28, s30, 11
    s_lshl_b32 s29, s47, 13
    s_add_u32 s28, s28, s29
    v_add_u32 v13, s28, v9
    v_add_u32 v13, {OWN}, v13          ; own-O LDS write address
    s_lshl_b32 s29, s17, 5
    s_add_u32 s29, s29, s18
    s_lshl_b32 s29, s29, 14
    s_add_u32 s42, s28, s29
    s_add_u32 s43, s42, 4096
    s_mov_b32 s45, 0
    """)
    A.label("K_xcc_chk")
    A(f"""
    s_waitcnt vmcnt(0)
    v_and_b32 v10, 0xfffffff8, v1
    v_cmp_ne_u32 vcc, s50, v10
    s_cmp_eq_u64 vcc, 0
    s_cbranch_scc1 K_xcc_ok
    s_add_u32 s45, s45, 1
    s_cmp_gt_u32 s45, 0x40000
    s_cbranch_scc1 K_xcc_ok
    s_sleep 1
    buffer_load_dword v1, v0, s[20:23], s51 offen sc1
    s_branch K_xcc_chk
    """)
    A.label("K_xcc_ok")
    A(f"""
    v_readfirstlane_b32 s28, v1
    s_nop 1
    v_cmp_ne_u32 vcc, s28, v1
    s_cmp_eq_u64 vcc, 0
    s_cselect_b32 s53, {1 if P['fast'] else 0}, 0
    s_waitcnt lgkmcnt(0)
    """)
    bar()
    for i in range(8):
        A(f"ds_read_b128 v[{96+4*i}:{99+4*i}], v5 offset:{i*1024}")
    A("ds_read_b32 v8, v6")
    A("s_waitcnt lgkmcnt(0)")
    bar()
    A("v_add_f32 v8, v8, v80")
    A("v_rcp_f32 v8, v8")
    for i in range(16):
        A(f"v_pk_add_f32 v[{16+2*i}:{17+2*i}], v[{16+2*i}:{17+2*i}], v[{96+2*i}:{97+2*i}]")
    for u in range(2):
        for a1 in range(2):
            for r in range(4):
                x = 16 + u*16 + a1*8 + 2*r
                A(f"v_pk_mul_f32 v[{x}:{x+1}], v[{x}:{x+1}], v[8:9] op_sel_hi:[1,0]")
            d = 48 + u*8 + a1*4
            for r in range(4):
                x = 16 + u*16 + a1*8 + 2*r
                A(f"v_cvt_pk_bf16_f32 v{d+r}, v{x}, v{x+1}")
    A("s_cmp_eq_u32 s53, 1")
    A("s_cbranch_scc1 K_ost_fast")
    for u in range(2):
        for a1 in range(2):
            d = 48 + u*8 + a1*4
            A(f"buffer_store_dwordx4 v[{d}:{d+3}], v9, s[20:23], s{42+u} offen offset:{a1*512} sc1")
    A("s_branch K_ost_done")
    A.label("K_ost_fast")
    for u in range(2):
        for a1 in range(2):
            d = 48 + u*8 + a1*4
            A(f"buffer_store_dwordx4 v[{d}:{d+3}], v9, s[20:23], s{42+u} offen offset:{a1*512}")
    A.label("K_ost_done")
    for u in range(2):
        for a1 in range(2):
            d = 48 + u*8 + a1*4
            A(f"ds_write_b128 v13, v[{d}:{d+3}] offset:{u*4096 + a1*512}")
    A(f"""
    s_lshl_b32 s28, s31, 2
    s_add_u32 s28, s28, s16
    s_lshl_b32 s28, s28, 2
    v_mov_b32 v10, s28
    v_mov_b32 v11, s50
    v_lshlrev_b32 v12, 2, v2
    v_lshrrev_b32 v13, 5, v2
    v_lshlrev_b32 v13, 4, v13          ; 16*(g>>1)
    v_bfe_u32 v14, v2, 4, 1
    v_lshlrev_b32 v14, 2, v14
    v_bfe_u32 v15, v2, 2, 2
    v_add_u32 v14, v14, v15            ; rho = 4(g&1)+r4
    v_add_u32 v13, v13, v14
    v_and_b32 v15, 3, v2
    v_lshlrev_b32 v15, 3, v15          ; 8c
    v_lshl_add_u32 v120, v13, 7, v15
    v_lshrrev_b32 v121, 1, v14         ; (rho>>1)&3
    s_lshl_b32 s28, s47, 1
    v_xor_b32 v121, s28, v121
    v_lshl_add_u32 v122, v121, 5, v120
    v_add_u32 v122, {REM}, v122
    v_xor_b32 v121, 1, v121
    v_lshl_add_u32 v123, v121, 5, v120
    v_add_u32 v123, {REM}, v123
    v_lshl_add_u32 v13, v13, 8, v15
    s_lshl_b32 s28, s47, 2
    v_xor_b32 v14, s28, v14
    v_lshl_add_u32 v112, v14, 5, v13
    v_xor_b32 v15, 1, v14
    v_lshl_add_u32 v113, v15, 5, v13
    v_xor_b32 v15, 2, v14
    v_lshl_add_u32 v114, v15, 5, v13
    v_xor_b32 v15, 3, v14
    v_lshl_add_u32 v115, v15, 5, v13
    v_add_u32 v116, 65536, v112
    v_add_u32 v117, 65536, v113
    v_add_u32 v118, 65536, v114
    v_add_u32 v119, 65536, v115
    v_lshlrev_b32 v3, 4, v2
    v_mov_b32 v7, v3                   ; lane*16
    s_lshl_b32 s28, s47, 10
    v_add_u32 v4, 1024, v3
    v_subrev_u32 v4, s28, v4
    v_add_u32 v3, s28, v3
    s_lshl_b32 s28, s30, 11
    v_add_u32 v5, s28, v3
    v_add_u32 v5, {OWN}, v5
    v_add_u32 v6, s28, v4
    v_add_u32 v6, {OWN}, v6
    s_lshl_b32 s42, s17, 5
    s_lshl_b32 s28, s19, 2
    s_add_u32 s42, s42, s28
    s_lshl_b32 s42, s42, 14
    s_lshl_b32 s28, s30, 11
    s_add_u32 s42, s42, s28
    s_lshl_b32 s28, s19, 3
    s_add_u32 s28, s28, s17
    s_lshl_b32 s28, s28, 2
    s_add_u32 s28, s28, s31
    s_mul_i32 s28, s28, 24576
    s_add_u32 s28, s28, {WS_PART}
    s_lshl_b32 s29, s16, 12
    s_add_u32 s46, s28, s29
    s_lshl_b32 s29, s16, 11
    s_add_u32 s43, s28, s29
    s_add_u32 s43, s43, 16384
    s_waitcnt lgkmcnt(0)
    """)
    stamp(A, "O issued", 0)
    bar()
    WB = [16, 32, 48]
    def wreads(T):
        buf = WB[T % 3]
        L = []
        for u in range(4):
            for sec in range(2):
                off = (32*T + 8*sec)*256
                base = 112 + u + (4 if off >= 65536 else 0)
                d = buf + u*4 + sec*2
                L.append(f"ds_read_b64_tr_b16 v[{d}:{d+1}], v{base} offset:{off % 65536}")
        return L
    def wmm(T):
        buf = WB[T % 3]
        L = []
        for u in range(4):
            for qq in range(2):
                acc = 64 + (u*2+qq)*4
                cin = "0" if T == 0 else f"v[{acc}:{acc+3}]"
                b = 128 + (T*2+qq)*4
                L.append(f"v_mfma_f32_16x16x32_bf16 v[{acc}:{acc+3}], v[{buf+u*4}:{buf+u*4+3}], v[{b}:{b+3}], {cin}")
        return L
    def kstep(T, vm=None):
        w = f"lgkmcnt({8 if T < 15 else 0})"
        A(f"s_waitcnt vmcnt({vm}) {w}" if vm is not None else f"s_waitcnt {w}")
        fill = wreads(T+2) if T < 14 else []
        mm_ = wmm(T)
        for i in range(8):
            A(mm_[i])
            if fill:
                if i == 7: A("s_waitcnt lgkmcnt(14)")
                A(fill[i])
    for T in range(4):
        for qq in range(2):
            d = 128 + (T*2+qq)*4
            A(f"ds_read_b128 v[{d}:{d+3}], v{5+qq} offset:{T*4096}")
    er = []
    for t in range(4):
        for e in range(2):
            for sec in range(2):
                d = 16 + (t*2+e)*4 + sec*2
                er.append(f"ds_read_b64_tr_b16 v[{d}:{d+1}], v{122+e} offset:{(32*t + 8*sec)*128}")
    for x in er[:7]: A(x)
    A("s_waitcnt lgkmcnt(7)")
    for x in er[7:15]: A(x)
    A("s_waitcnt lgkmcnt(11)")
    A(er[15])
    for t in range(4):
        A(f"s_waitcnt lgkmcnt({12-4*t})")
        for e in range(2):
            for qq in range(2):
                acc = 96 + (e*2+qq)*4
                cin = "0" if t == 0 else f"v[{acc}:{acc+3}]"
                a_ = 16 + (t*2+e)*4
                b_ = 128 + (t*2+qq)*4
                A(f"v_mfma_f32_16x16x32_bf16 v[{acc}:{acc+3}], v[{a_}:{a_+3}], v[{b_}:{b_+3}], {cin}")
    for x in wreads(0): A(x)
    A("s_waitcnt vmcnt(0)")
    A("v_cmp_eq_u32 vcc, 0, v2")
    A("s_and_saveexec_b64 s[38:39], vcc")
    A("s_cmp_eq_u32 s53, 1")
    A("s_cbranch_scc1 K_fl_fast")
    A("buffer_store_dword v11, v10, s[20:23], s52 offen sc1")
    A("s_branch K_fl_done")
    A.label("K_fl_fast")
    A("buffer_store_dword v11, v10, s[20:23], s52 offen")
    A.label("K_fl_done")
    A("s_mov_b64 exec, s[38:39]")
    stamp(A, "flag sent", 0)
    w1 = wreads(1)
    for x in w1[:7]: A(x)
    A("s_waitcnt lgkmcnt(7)")
    A(w1[7])
    for e in range(2):
        for qq in range(2):
            acc = 96 + (e*2+qq)*4
            A(f"v_cvt_pk_bf16_f32 v{124+qq*2}, v{acc}, v{acc+1}" if e == 0 else f"v_cvt_pk_bf16_f32 v{96+qq*2}, v{acc}, v{acc+1}")
            A(f"v_cvt_pk_bf16_f32 v{125+qq*2}, v{acc+2}, v{acc+3}" if e == 0 else f"v_cvt_pk_bf16_f32 v{97+qq*2}, v{acc+2}, v{acc+3}")
        A(f"buffer_store_dwordx4 v[{124 if e == 0 else 96}:{127 if e == 0 else 99}], v7, s[20:23], s43 offen offset:{e*1024} sc1")
    for T in range(4): kstep(T)
    def poll(nlanes, soff, tag, voff="v12"):
        lab = f"K_poll{tag}"; done = f"K_polldone{tag}"
        A(f"""
        s_mov_b32 s45, 0
        v_cmp_gt_u32 vcc, {nlanes}, v2
        s_and_b64 s[38:39], vcc, exec
        """)
        A.label(lab)
        A(f"""
        s_mov_b64 exec, s[38:39]
        buffer_load_dword v10, {voff}, s[20:23], {soff} offen sc1
        s_waitcnt vmcnt(0)
        v_cmp_ne_u32 vcc, s50, v10
        s_mov_b64 exec, -1
        s_cmp_eq_u64 vcc, 0
        s_cbranch_scc1 {done}
        s_add_u32 s45, s45, 1
        s_cmp_gt_u32 s45, 0x40000
        s_cbranch_scc1 {done}
        s_sleep {P['sleep']}
        s_branch {lab}
        """)
        A.label(done)
    poll(16, "s52", 1)
    stamp(A, "flags1", 0)
    for hh in range(1, 4):
        A(f"s_add_u32 s28, s31, {hh}")
        A("s_and_b32 s28, s28, 3")
        A("s_lshl_b32 s28, s28, 14")
        A("s_add_u32 s28, s28, s42")
        for t in range(4):
            T = hh*4 + t
            if t: A("s_add_u32 s28, s28, 4096")
            for qq in range(2):
                d = 128 + (T*2+qq)*4
                A(f"buffer_load_dwordx4 v[{d}:{d+3}], v{3+qq}, s[20:23], s28 offen sc1")
    for T in range(4, 16):
        if T == 8: bar()
        kstep(T, vm=2*(15-T))
    stamp(A, "oproj done", 0)
    A(f"""
    s_lshl_b32 s29, s17, 2
    s_add_u32 s29, s29, s16
    s_lshl_b32 s29, s29, 7
    s_add_u32 s44, s29, {WS_FLAG2}     ; line (b, w)
    s_lshl_b32 s29, s19, 2
    s_add_u32 s29, s29, s31
    s_lshl_b32 s29, s29, 2             ; (j*4+i)*4
    v_mov_b32 v10, s29
    v_mov_b32 v11, s50
    """)
    for u in range(4):
        for qq in range(2):
            acc = 64 + (u*2+qq)*4
            A(f"v_cvt_pk_bf16_f32 v{16+u*4+qq*2}, v{acc}, v{acc+1}")
            A(f"v_cvt_pk_bf16_f32 v{17+u*4+qq*2}, v{acc+2}, v{acc+3}")
        A(f"buffer_store_dwordx4 v[{16+u*4}:{19+u*4}], v7, s[20:23], s46 offen offset:{u*1024} sc1")
    stamp(A, "part issued", 0)
    A(f"""
    s_waitcnt vmcnt(0)
    v_cmp_eq_u32 vcc, 0, v2
    s_and_saveexec_b64 s[38:39], vcc
    buffer_store_dword v11, v10, s[20:23], s44 offen sc1
    s_mov_b64 exec, s[38:39]
    s_cmp_ge_u32 s16, 3
    s_cbranch_scc1 K_fin_skip
    s_mov_b32 s24, s14
    s_mov_b32 s25, s15
    s_mov_b32 s26, {8*64*576*2}
    s_mov_b32 s27, 0x20000
    s_mov_b32 s54, 0xffff0000
    s_cmp_eq_u32 s16, 2
    s_cbranch_scc1 K_fin_ext
    """)
    A(f"""
    s_lshr_b32 s53, s19, 1             ; pw
    s_and_b32 s28, s19, 1
    s_lshl_b32 s28, s28, 1
    s_add_u32 s28, s28, s16            ; u
    s_lshl_b32 s29, s17, 2
    s_add_u32 s29, s29, s31
    s_mul_i32 s42, s29, 24576
    s_add_u32 s42, s42, {WS_PART}
    s_lshl_b32 s29, s53, 12
    s_add_u32 s42, s42, s29
    s_lshl_b32 s29, s28, 10
    s_add_u32 s42, s42, s29            ; + j'*32*24576
    s_lshl_b32 s29, s17, 2
    s_add_u32 s29, s29, s53
    s_lshl_b32 s29, s29, 7
    s_add_u32 s44, s29, {WS_FLAG2}
    s_lshl_b32 s29, s31, 2
    s_add_u32 s44, s44, s29
    v_lshlrev_b32 v12, 4, v2
    s_and_b32 s55, s53, 1              ; qh
    s_lshr_b32 s56, s53, 1             ; nh
    s_lshl_b32 s29, s56, 2
    s_add_u32 s28, s28, s29            ; nt (0..7)
    s_lshl_b32 s28, s28, 5
    s_lshl_b32 s29, s31, 8
    s_add_u32 s28, s28, s29
    v_and_b32 v4, 15, v2
    v_lshrrev_b32 v5, 4, v2
    v_mul_u32_u24 v9, 1152, v4
    v_lshl_add_u32 v9, v5, 3, v9
    s_lshl_b32 s29, s17, 6
    s_lshl_b32 s43, s55, 5
    s_add_u32 s29, s29, s43
    s_mul_i32 s29, s29, 1152
    s_add_u32 s28, s28, s29
    s_mul_i32 s29, s56, {16*1152}
    s_add_u32 s43, s28, s29
    s_xor_b32 s29, s56, 1
    s_mul_i32 s29, s29, {16*1152}
    s_add_u32 s46, s28, s29
    """)
    poll(8, "s44", 2)
    stamp(A, "flags2", 0)
    for j in range(8):
        A(f"s_add_u32 s28, s42, {j*32*24576}")
        A(f"buffer_load_dwordx4 v[{16+4*j}:{19+4*j}], v7, s[20:23], s28 offen sc1")
    def accum(n):
        for j in range(n):
            A(f"s_waitcnt vmcnt({n-1-j})")
            for d in range(4):
                x = 16 + 4*j + d
                if j == 0:
                    A(f"v_lshlrev_b32 v{48+2*d}, 16, v{x}")
                    A(f"v_and_b32 v{49+2*d}, s54, v{x}")
                else:
                    A(f"v_lshlrev_b32 v56, 16, v{x}")
                    A(f"v_and_b32 v57, s54, v{x}")
                    A(f"v_pk_add_f32 v[{48+2*d}:{49+2*d}], v[{48+2*d}:{49+2*d}], v[56:57]")
    accum(8)
    for d in range(4):
        A(f"v_cvt_pk_bf16_f32 v{60+d}, v{48+2*d}, v{49+2*d}")
    A("buffer_store_dwordx2 v[60:61], v9, s[24:27], s43 offen")
    A("buffer_store_dwordx2 v[62:63], v9, s[24:27], s46 offen")
    A("s_branch K_fin_skip")
    A.label("K_fin_ext")
    A(f"""
    s_lshl_b32 s28, s19, 2
    s_add_u32 s28, s28, s31            ; r
    s_lshr_b32 s53, s28, 3             ; pw
    s_bfe_u32 s55, s28, 0x10002        ; e'
    s_and_b32 s56, s28, 3              ; g_p
    s_lshl_b32 s29, s17, 2
    s_mul_i32 s42, s29, 24576
    s_add_u32 s42, s42, {WS_PART + 16384}
    s_lshl_b32 s29, s53, 11
    s_add_u32 s42, s42, s29
    s_lshl_b32 s29, s55, 10
    s_add_u32 s42, s42, s29
    s_lshl_b32 s29, s56, 8
    s_add_u32 s42, s42, s29
    v_and_b32 v4, 15, v2               ; item
    v_lshrrev_b32 v5, 4, v2            ; pg
    s_mov_b32 s29, {64*24576}
    v_mul_lo_u32 v8, v5, s29
    v_lshl_add_u32 v8, v4, 4, v8
    s_lshl_b32 s29, s17, 2
    s_add_u32 s29, s29, s53
    s_lshl_b32 s29, s29, 7
    s_add_u32 s44, s29, {WS_FLAG2}
    v_lshlrev_b32 v12, 2, v2
    s_and_b32 s57, s53, 1              ; qh
    s_lshr_b32 s53, s53, 1             ; nh
    s_lshl_b32 s28, s53, 1
    s_add_u32 s28, s28, s55
    s_lshl_b32 s28, s28, 5
    s_lshl_b32 s29, s56, 3
    s_add_u32 s28, s28, s29
    s_add_u32 s28, s28, 1024
    v_mul_u32_u24 v9, 1152, v4
    s_lshl_b32 s29, s17, 6
    s_lshl_b32 s43, s57, 5
    s_add_u32 s29, s29, s43
    s_mul_i32 s29, s29, 1152
    s_add_u32 s28, s28, s29
    s_mul_i32 s29, s53, {16*1152}
    s_add_u32 s43, s28, s29
    s_xor_b32 s29, s53, 1
    s_mul_i32 s29, s29, {16*1152}
    s_add_u32 s46, s28, s29
    """)
    poll(32, "s44", 3)
    for k in range(8):
        A(f"s_add_u32 s28, s42, {((k>>2)*32 + (k&3))*24576}")
        A(f"buffer_load_dwordx4 v[{16+4*k}:{19+4*k}], v8, s[20:23], s28 offen sc1")
    accum(8)
    for d in range(8):
        A(f"v_mov_b32 v{16+d}, v{48+d}")
    A("s_nop 1")
    for d in range(8):
        A(f"v_permlane16_swap_b32 v{48+d}, v{16+d}")
    A("s_nop 1")
    for d in range(8):
        A(f"v_add_f32 v{48+d}, v{48+d}, v{16+d}")
    for d in range(8):
        A(f"v_mov_b32 v{16+d}, v{48+d}")
    A("s_nop 1")
    for d in range(8):
        A(f"v_permlane32_swap_b32 v{48+d}, v{16+d}")
    A("s_nop 1")
    for d in range(8):
        A(f"v_add_f32 v{48+d}, v{48+d}, v{16+d}")
    for d in range(4):
        A(f"v_cvt_pk_bf16_f32 v{60+d}, v{48+2*d}, v{49+2*d}")
    A("""
    v_cmp_gt_u32 vcc, 16, v2
    s_and_saveexec_b64 s[38:39], vcc
    buffer_store_dwordx2 v[60:61], v9, s[24:27], s43 offen
    buffer_store_dwordx2 v[62:63], v9, s[24:27], s46 offen
    s_mov_b64 exec, s[38:39]
    """)
    A.label("K_fin_skip")
    if P["dbgspan"]:
        A("""
        s_cmp_lg_u32 s16, 0
        s_cbranch_scc1 K_ds_done2
        s_waitcnt vmcnt(0)
        s_memrealtime s[58:59]
        s_waitcnt lgkmcnt(0)
        s_sub_u32 s58, s58, s50
        v_mov_b32 v10, s58
        s_and_b32 s28, s2, 7
        s_add_u32 s28, s28, 1
        s_lshl_b32 s28, s28, 2
        v_mov_b32 v11, s28
        v_cmp_eq_u32 vcc, 0, v2
        s_and_saveexec_b64 s[38:39], vcc
        s_cbranch_execz K_ds_done
        global_atomic_umax v11, v10, s[32:33]
        """)
        A.label("K_ds_done")
        A("s_mov_b64 exec, s[38:39]")
        A.label("K_ds_done2")
    if P["stamps"]:
        A("v_mov_b32 v0, v2")
        A("s_cmp_eq_u32 s16, 0")
        A("s_cbranch_scc0 K_end")
        stamp_write(A, 0, 0)
        A("s_endpgm")
        A.label("K_st4")
        stamp_write(A, 1, 256)
    A.label("K_end")
    A("s_endpgm")
    A.label("K_codeend")

A = Asm()
hdr = f"""; generated by gen8.py  {' '.join(sys.argv[2:])}
; @launch grid=(256,1,1) block=(512,1,1) lds=163840
.amdgcn_target "amdgcn-amd-amdhsa--gfx950"
.text
"""
kernel(A)
out = hdr + A.text() + '.section .rodata,"a"\n' + kernel_desc(NAME + "_kernel")
open(sys.argv[1], "w").write(out)
```
